```python
import torch

def _softmax(x, axis=-1):
    return torch.softmax(x, dim=axis)

def _gelu(x):
    return torch.nn.functional.gelu(x, approximate='tanh')

def _silu(x):
    return torch.nn.functional.silu(x)

def _sigmoid(x):
    return torch.sigmoid(x)

def _layernorm(x, axis=-1, eps=1e-05):
    m = x.mean(dim=axis, keepdim=True)
    v = x.var(dim=axis, keepdim=True, unbiased=False)
    return (x - m) / torch.sqrt(v + eps)

def _scatter_add(tgt, idx, src, axis=0):
    return tgt.clone().index_add_(axis, idx, src)

def _segment_sum(src, seg, n):
    out = torch.zeros((n,) + src.shape[1:], dtype=src.dtype)
    return out.index_add_(0, seg, src)

def _pad(x, pw):
    flat = tuple((v for pair in reversed(pw) for v in pair))
    return torch.nn.functional.pad(x, flat)
kernel_name = 'sequential_preLN__mha_block__mixer_gmlp__prompt'

def setup_inputs():

    _w = lambda a: (lambda t: t.to(torch.bfloat16) if t.is_floating_point() else t)(torch.as_tensor(a))

    def _A_setup():
        B, S, D, H = (1, 2048, 1024, 32)
        return {'x': _w((lambda *s: torch.randn(*s, dtype=torch.bfloat16) * 0.05)(B, S, D)), 'wqkv': _w((lambda *s: torch.randn(*s, dtype=torch.bfloat16) * 0.05)(D, 3 * D)), 'wo': _w((lambda *s: torch.randn(*s, dtype=torch.bfloat16) * 0.05)(D, D))}
    _A_in = _A_setup()

    def _B_setup():
        B, S, D, F = (1, 2048, 1024, 3584)
        Fh = F // 2
        return {'x': _w((lambda *s: torch.randn(*s, dtype=torch.bfloat16) * 0.05)(B, S, D)), 'w_in': _w((lambda *s: torch.randn(*s, dtype=torch.bfloat16) * 1.6)(D, 2 * Fh)), 'w_sp': _w(0.01 * (lambda *s: torch.randn(*s, dtype=torch.bfloat16) * 1.6)(S, S)), 'b_sp': _w(1.0 + 0.01 * (lambda *s: torch.randn(*s, dtype=torch.bfloat16) * 0.05)(S)), 'w_out': _w((lambda *s: torch.randn(*s, dtype=torch.bfloat16) * 0.05)(Fh, D))}
    _B_in = _B_setup()
    return {'A_x': _A_in['x'], 'A_wqkv': _A_in['wqkv'], 'A_wo': _A_in['wo'], 'B_x': _B_in['x'], 'B_w_in': _B_in['w_in'], 'B_w_sp': _B_in['w_sp'], 'B_b_sp': _B_in['b_sp'], 'B_w_out': _B_in['w_out']}

def reference(A_x, A_wqkv, A_wo, B_x, B_w_in, B_w_sp, B_b_sp, B_w_out):

    def _A_ref(x, wqkv, wo):
        B, S, D = x.shape
        H = 32
        Dh = D // H
        qkv = (lambda x, *d: x.permute(*d))((x @ wqkv).reshape(B, S, 3, H, Dh), 2, 0, 3, 1, 4)
        q, k, v = (qkv[0], qkv[1], qkv[2])
        scores = torch.einsum('bhqd,bhkd->bhqk', q, k) * Dh ** (-0.5)
        p = _softmax(scores, axis=-1)
        o = torch.einsum('bhqk,bhkd->bhqd', p, v)
        return (lambda x, *d: x.permute(*d))(o, 0, 2, 1, 3).reshape(B, S, D) @ wo

    def _B_ref(x, w_in, w_sp, b_sp, w_out):
        B, S, D = x.shape
        F = w_in.shape[-1]
        Fh = F // 2
        z = _gelu(torch.einsum('bsd,df->bsf', x, w_in))
        z1 = z[..., :Fh].clone()
        z2 = _layernorm(z[..., Fh:], axis=-1)
        g = torch.einsum('ts,bsf->btf', w_sp, z2) + b_sp[None, :, None]
        return torch.einsum('bsf,fd->bsd', z1 * g, w_out)
    x = A_x
    h = x + _A_ref(_layernorm(x, axis=-1), A_wqkv, A_wo)
    h2 = h + _B_ref(_layernorm(h, axis=-1), B_w_in, B_w_sp, B_b_sp, B_w_out)
    return h2
```

```python
import re

HEADER = """; Kernarg layout for this problem (88 bytes, ptrs only, base s[0:1]):
;   offset  80: d_ws      268435456 bytes workspace (unspecified values whenever your kernel or launch list starts; a list's later launches find what earlier ones wrote)
"""

TRANS = ('v_exp_f32', 'v_log_f32', 'v_rcp_f32', 'v_rsq_f32', 'v_sqrt_f32', 'v_sin_f32', 'v_cos_f32',
         'v_rcp_iflag_f32', 'v_exp_f16', 'v_log_f16', 'v_rcp_f16', 'v_rsq_f16', 'v_sqrt_f16')

_reg_re = re.compile(r'^([vas])(\d+)$')
_rng_re = re.compile(r'^([vas])\[(\d+):(\d+)\]$')


def parse_regs(tok):
    t = tok.strip()
    t = t.lstrip('-')
    if t.startswith('abs(') and t.endswith(')'):
        t = t[4:-1]
    if t.startswith('|') and t.endswith('|'):
        t = t[1:-1]
    if t.startswith('neg(') and t.endswith(')'):
        t = t[4:-1]
    m = _reg_re.match(t)
    if m:
        return {(m.group(1), int(m.group(2)))}
    m = _rng_re.match(t)
    if m:
        return {(m.group(1), i) for i in range(int(m.group(2)), int(m.group(3)) + 1)}
    if t in ('vcc', 'vcc_lo', 'vcc_hi'):
        return {('vcc', 0)}
    if t in ('exec', 'exec_lo', 'exec_hi'):
        return {('exec', 0)}
    if t == 'm0':
        return {('m0', 0)}
    return set()


def split_ops(s):
    out, depth, cur = [], 0, ''
    for ch in s:
        if ch in '[(':
            depth += 1
        if ch in '])':
            depth -= 1
        if ch == ',' and depth == 0:
            out.append(cur.strip())
            cur = ''
        else:
            cur += ch
    if cur.strip():
        out.append(cur.strip())
    return out


class Ins:
    __slots__ = ('text', 'op', 'dst', 'src', 'srcC', 'srcAB', 'kind', 'passes', 'target', 'states', 'mods',
                 'store_data', 'is_dpp', 'is_lds_dma', 'opsel')

    def __init__(self, text):
        self.text = text
        body = text.split(';')[0].strip()
        parts = body.split(None, 1)
        op = parts[0]
        rest = parts[1] if len(parts) > 1 else ''
        for suf in ('_e32', '_e64', '_sdwa', '_dpp'):
            if op.endswith(suf) and op.startswith('v_'):
                base = op[:-len(suf)]
                break
        else:
            base = op
        self.op = base
        ops = split_ops(rest)
        mods = ''
        if ops:
            last = ops[-1].split(None, 1)
            if len(last) > 1 and not op.startswith('s_waitcnt'):
                ops[-1] = last[0]
                mods = last[1]
        self.mods = mods
        self.dst, self.src, self.srcC, self.srcAB = set(), set(), set(), set()
        self.store_data = set()
        self.passes = 0
        self.target = None
        self.states = 1
        self.is_dpp = op.endswith('_dpp') or any(k in mods for k in ('row_', 'quad_perm', 'wave_', 'row_bcast'))
        self.opsel = op.endswith('_sdwa') or ('op_sel:' in mods and not base.startswith('v_pk_'))
        self.is_lds_dma = False
        R = [parse_regs(o) for o in ops]
        allr = lambda lst: set().union(*lst) if lst else set()
        if base.startswith('v_mfma') or base.startswith('v_smfmac'):
            self.kind = 'mfma'
            self.dst = R[0]
            self.srcAB = R[1] | R[2]
            self.srcC = R[3]
            self.src = self.srcAB | self.srcC
            if '32x32x16' in base or '32x32x8' in base:
                self.passes = 8
            elif '16x16x32' in base or '16x16x16' in base:
                self.passes = 4
            elif '4x4x4' in base:
                self.passes = 2
            else:
                raise ValueError('unknown mfma ' + base)
        elif base.startswith('v_'):
            self.kind = 'trans' if base in TRANS else 'valu'
            if base.startswith('v_cmp'):
                self.dst = set(R[0])
                if base.startswith('v_cmpx'):
                    self.dst |= {('exec', 0)}
                self.src = allr(R[1:])
            elif base in ('v_add_co_u32', 'v_sub_co_u32', 'v_addc_co_u32', 'v_subb_co_u32', 'v_div_scale_f32',
                          'v_mad_u64_u32', 'v_subrev_co_u32'):
                self.dst = R[0] | R[1]
                self.src = allr(R[2:])
            elif base.startswith('v_permlane') and 'swap' in base or base == 'v_swap_b32':
                self.dst = R[0] | R[1]
                self.src = R[0] | R[1]
            elif base == 'v_nop':
                pass
            else:
                self.dst = R[0]
                self.src = allr(R[1:])
                if base.startswith('v_fmac') or base.startswith('v_dot2c') or base.startswith('v_pk_fmac') \
                        or base == 'v_writelane_b32' or self.is_dpp or op.endswith('_sdwa'):
                    self.src |= R[0]
                if base.startswith('v_dot'):
                    self.srcAB = R[1] | R[2]
                if base == 'v_cndmask_b32' and len(R) == 3:
                    self.src |= {('vcc', 0)}
                if base == 'v_div_fmas_f32':
                    self.src |= {('vcc', 0)}
        elif base.startswith('buffer_') or base.startswith('global_') or base.startswith('flat_'):
            self.kind = 'vmem'
            toks = mods.split()
            if base.startswith('buffer_wbl2') or base.startswith('buffer_inv'):
                pass
            elif 'lds' in toks or base.startswith('global_load_lds'):
                self.is_lds_dma = True
                self.src = allr(R) | {('m0', 0)}
            elif base.startswith('buffer_load') or base.startswith('global_load'):
                self.dst = R[0]
                self.src = allr(R[1:])
            elif base.startswith('buffer_store'):
                self.src = allr(R)
                if base.endswith('x3') or base.endswith('x4'):
                    self.store_data = R[0]
            elif base.startswith('global_store'):
                self.src = allr(R)
                if base.endswith('x3') or base.endswith('x4'):
                    self.store_data = R[1]
            elif 'atomic' in base:
                self.src = allr(R)
                if 'sc0' in toks:
                    self.dst = R[0]
            else:
                raise ValueError('unknown vmem ' + text)
        elif base.startswith('ds_'):
            self.kind = 'ds'
            if base.startswith('ds_read') or base.startswith('ds_bpermute') or base.startswith('ds_permute') \
                    or base.startswith('ds_swizzle') or '_rtn' in base:
                self.dst = R[0]
                self.src = allr(R[1:])
            else:
                self.src = allr(R)
        elif base.startswith('s_'):
            self.kind = 'salu'
            if base == 's_nop':
                self.states = int(ops[0], 0) + 1
            elif base in ('s_branch',) or base.startswith('s_cbranch'):
                self.kind = 'branch'
                self.target = ops[0]
            elif base in ('s_waitcnt', 's_barrier', 's_endpgm', 's_setprio', 's_sleep', 's_setreg_b32',
                          's_setreg_imm32_b32'):
                pass
            elif base.startswith('s_cmp') or base.startswith('s_bitcmp'):
                self.src = allr(R)
            else:
                self.dst = set(R[0]) if R else set()
                self.src = allr(R[1:])
                if 'saveexec' in base:
                    self.dst |= {('exec', 0)}
                    self.src |= {('exec', 0)}
        else:
            raise ValueError('unknown instruction: ' + text)


def isvalu(i):
    return i.kind in ('valu', 'trans')


def vregs(s):
    return {r for r in s if r[0] in ('v', 'a')}


def sregs(s):
    return {r for r in s if r[0] in ('s', 'vcc')}


def required(p, c):
    need = 0
    if isvalu(p):
        wv = vregs(p.dst)
        ws = sregs(p.dst)
        if wv:
            if p.op.startswith('v_dot'):
                if c.op == p.op:
                    if wv & c.srcAB:
                        need = max(need, 3)
                elif wv & (c.src | c.dst):
                    need = max(need, 3)
            if c.kind == 'mfma' and wv & c.src:
                need = max(need, 2)
            if isvalu(c):
                if c.op.startswith('v_permlane') and wv & c.src:
                    need = max(need, 2)
                if c.is_dpp and wv & c.src:
                    need = max(need, 2)
                if c.op in ('v_readlane_b32', 'v_readfirstlane_b32') and wv & c.src:
                    need = max(need, 1)
                if p.kind == 'trans' and c.kind != 'trans' and wv & c.src:
                    need = max(need, 1)
                if p.opsel and wv & (c.src | c.dst):
                    need = max(need, 1)
            if p.kind == 'trans' and c.kind in ('vmem', 'ds') and wv & c.src:
                need = max(need, 1)
        if ws:
            if isvalu(c) and ws & c.src:
                need = max(need, 4 if c.op in ('v_readlane_b32', 'v_writelane_b32', 'v_div_fmas_f32') else 2)
            if c.kind == 'mfma' and ws & c.src:
                need = max(need, 2)
            if c.kind == 'vmem' and ws & c.src:
                need = max(need, 5)
            if c.kind in ('salu', 'branch') and (ws & c.src or (c.kind == 'branch' and 'vcc' in c.op and ('vcc', 0) in ws)):
                need = max(need, 1)
        if ('exec', 0) in p.dst:
            if c.kind == 'mfma' or c.op.startswith('v_permlane') or c.op in (
                    'v_readlane_b32', 'v_readfirstlane_b32', 'v_writelane_b32'):
                need = max(need, 4)
            if c.is_dpp:
                need = max(need, 5)
            if isvalu(c) and ('exec', 0) in c.src:
                need = max(need, 2)
    elif p.kind == 'mfma':
        idx = {2: 0, 4: 1, 8: 2, 16: 3}[p.passes]
        if c.kind == 'mfma':
            if p.dst & c.srcC:
                if p.dst == c.srcC and p.passes == c.passes:
                    need = max(need, (2, 0, 0, 0)[idx])
                else:
                    need = max(need, (4, 6, 10, 18)[idx])
            if p.dst & c.srcAB:
                need = max(need, (5, 8, 12, 20)[idx])
            if p.dst & c.dst and not (p.dst == c.srcC and p.passes == c.passes):
                need = max(need, (4, 6, 10, 18)[idx] if p.passes > c.passes else 0)
        elif isvalu(c):
            if p.dst & (c.src | c.dst):
                need = max(need, (5, 8, 12, 20)[idx])
            if p.srcC & c.dst:
                need = max(need, (1, 3, 7, 15)[idx])
        elif c.kind in ('vmem', 'ds'):
            if p.dst & (c.src | c.dst):
                need = max(need, (5, 8, 12, 20)[idx])
            if p.srcC & c.dst:
                need = max(need, (1, 3, 7, 15)[idx])
    elif p.kind == 'salu':
        if ('m0', 0) in p.dst and (c.is_lds_dma or 'addtid' in c.op):
            need = max(need, 1)
    elif p.kind == 'vmem':
        if p.store_data:
            if isvalu(c) and p.store_data & c.dst:
                need = max(need, 2)
            elif p.store_data & c.dst:
                need = max(need, 1)
    return need


MAXW = 21


def pad_hazards(lines, name='', verbose=True):
    items = []
    for ln in lines:
        s = ln.split(';')[0].strip()
        if not s:
            continue
        if s.endswith(':') or s.startswith('.'):
            items.append(s)
        else:
            items.append(Ins(ln.strip()))
    inserted = []
    for it in range(6):
        labels = {}
        for i, x in enumerate(items):
            if isinstance(x, str) and x.endswith(':'):
                labels[x[:-1]] = i
        branches_to = {}
        for i, x in enumerate(items):
            if isinstance(x, Ins) and x.kind == 'branch':
                branches_to.setdefault(labels[x.target], []).append(i)
        out = []
        changed = False
        extra = [0] * len(items)
        for i, c in enumerate(items):
            if not isinstance(c, Ins):
                continue
            if c.kind == 'salu' and not c.src:
                continue
            need = 0
            why = None
            stack = [(i - 1, extra[i], True)]
            seen = set()
            while stack:
                j, dist, fall = stack.pop()
                while j >= 0 and dist < MAXW:
                    x = items[j]
                    if isinstance(x, str):
                        if x.endswith(':'):
                            for b in branches_to.get(j, ()):
                                if (b, dist) not in seen:
                                    seen.add((b, dist))
                                    stack.append((b, dist, False))
                        j -= 1
                        fall = True
                        continue
                    if fall and x.op in ('s_branch', 's_endpgm'):
                        break
                    fall = True
                    r = required(x, c)
                    if r - dist > need:
                        need = r - dist
                        why = x
                    dist += x.states + extra[j]
                    j -= 1
            if need > 0:
                extra[i] += need
                changed = True
                inserted.append((need, why.text, c.text))
        for i, x in enumerate(items):
            n = extra[i]
            while n > 0:
                k = min(n, 16)
                out.append(Ins(f's_nop {k - 1}'))
                n -= k
            out.append(x)
        items = out
        if not changed:
            break
    if verbose and inserted:
        print(f'[{name}] hazard pads inserted: {len(inserted)}')
        if verbose > 1:
            for n, a, b in inserted:
                print(f'   {n}: {a}  ->  {b}')
    res = []
    for x in items:
        if isinstance(x, str):
            res.append(x)
        else:
            res.append('  ' + x.text)
    return res, items


class Kernel:
    def __init__(self, name, grid, block=256, lds=0):
        self.name = name
        self.grid = grid
        self.block = block
        self.lds = lds
        self.lines = []
        self.nv = 0
        self.na = 0
        self.ns = 0
        self._lab = 0
        self.force_vgpr = None

    def __call__(self, text):
        for ln in text.split('\n'):
            if ln.strip():
                self.lines.append(ln.strip())

    def v(self, n=1, align=None):
        al = align or (2 if n > 1 else 1)
        self.nv = (self.nv + al - 1) // al * al
        r = self.nv
        self.nv += n
        assert self.nv <= 256, 'out of VGPRs'
        return r

    def a(self, n=1, align=None):
        al = align or (2 if n > 1 else 1)
        self.na = (self.na + al - 1) // al * al
        r = self.na
        self.na += n
        assert self.na <= 256, 'out of AGPRs'
        return r

    def s(self, n=1, align=None):
        al = align or (4 if n >= 4 else (2 if n > 1 else 1))
        self.ns = (self.ns + al - 1) // al * al
        r = self.ns
        self.ns += n
        assert self.ns <= 102, 'out of SGPRs'
        return r

    def label(self, base='L'):
        self._lab += 1
        return f'.L{self.name}_{base}_{self._lab}'

    def finish(self, verbose=1):
        body, items = pad_hazards(self.lines, self.name, verbose)
        mv = ma = ms = -1
        for x in items:
            if isinstance(x, Ins):
                for k, n in x.dst | x.src:
                    if k == 'v':
                        mv = max(mv, n)
                    elif k == 'a':
                        ma = max(ma, n)
                    elif k == 's':
                        ms = max(ms, n)
        nv = max(mv + 1, 4)
        acc = (nv + 3) // 4 * 4
        tot = acc + ma + 1 if ma >= 0 else nv
        if self.force_vgpr:
            tot = max(tot, self.force_vgpr)
        nins = sum(1 for x in items if isinstance(x, Ins))
        if verbose:
            print(f'[{self.name}] vgpr={nv} agpr={ma + 1} total={tot} sgpr={ms + 1} lds={self.lds} ins={nins}')
        text = [f'.globl {self.name}', '.p2align 8', f'.type {self.name},@function', f'{self.name}:'] + body
        desc = ['.p2align 6', f'.amdhsa_kernel {self.name}',
                f'  .amdhsa_next_free_vgpr {tot}',
                f'  .amdhsa_next_free_sgpr {max(ms + 1, 16)}',
                f'  .amdhsa_accum_offset {acc}',
                '  .amdhsa_group_segment_fixed_size 0',
                '  .amdhsa_kernarg_size 88',
                '  .amdhsa_user_sgpr_count 2',
                '  .amdhsa_user_sgpr_kernarg_segment_ptr 1',
                '  .amdhsa_system_sgpr_workgroup_id_x 1',
                '  .amdhsa_float_denorm_mode_32 3',
                '  .amdhsa_ieee_mode 0',
                '  .amdhsa_dx10_clamp 1',
                '.end_amdhsa_kernel']
        return text, desc


def build_file(kernels, launches=None, verbose=1):
    launches = launches or kernels
    out = [HEADER.rstrip('\n')]
    for k in launches:
        out.append(f'; @launch kernel={k.name} grid=({k.grid},1,1) block=({k.block},1,1) lds={k.lds}')
    out.append('.amdgcn_target "amdgcn-amd-amdhsa--gfx950"')
    out.append('.text')
    descs = []
    for k in kernels:
        t, d = k.finish(verbose)
        out += t
        descs += d
    out.append('.section .rodata,"a"')
    out += descs
    return '\n'.join(out) + '\n'


def vr(b, n=1):
    return f'v{b}' if n == 1 else f'v[{b}:{b + n - 1}]'


def ar(b, n=1):
    return f'a{b}' if n == 1 else f'a[{b}:{b + n - 1}]'


def sr(b, n=1):
    return f's{b}' if n == 1 else f's[{b}:{b + n - 1}]'


def f2u(x):
    import struct
    return struct.unpack('<I', struct.pack('<f', x))[0]


def hexf(x):
    return hex(f2u(x))
```

```python
from kernels import *

M32 = 'v_mfma_f32_32x32x16_bf16'
M16 = 'v_mfma_f32_16x16x32_bf16'


def max16(k, dst, s, prev=None):
    k(f'v_max3_f32 v{dst}, v{s}, v{s + 1}, ' + (f'v{prev}' if prev is not None else f'v{s + 1}'))
    for i in range(2, 16, 2):
        k(f'v_max3_f32 v{dst}, v{s + i}, v{s + i + 1}, v{dst}')


def xhalf_max(k, v, t):
    k(f'v_mov_b32 v{t}, v{v}')
    k(f'v_permlane32_swap_b32 v{v}, v{t}')
    k(f'v_max_f32 v{v}, v{v}, v{t}')


def k3_attn(limit=2.0 ** 64, prio=False):
    NR = 4
    k = Kernel('k3_attn_kernel', 256, 512, NR * 32768)
    start(k, 256)
    ws = k.s(2)
    k(f's_load_dwordx2 {sr(ws, 2)}, s[0:1], {A_WS}')
    sw, vl = wave_lane(k)
    sh, smt = k.s(), k.s()
    k(f's_and_b32 s{sh}, s2, 7')
    k(f's_lshl_b32 s{sh}, s{sh}, 2')
    k(f's_bfe_u32 s3, s2, {3 | (2 << 16)}')
    k(f's_add_u32 s{sh}, s{sh}, s3')
    k('s_lshr_b32 s3, s2, 5')
    k('s_lshl_b32 s3, s3, 3')
    k(f's_add_u32 s{smt}, s3, s{sw}')
    vl16, vd, vq = k.v(), k.v(), k.v()
    k(f'v_lshlrev_b32 v{vl16}, 4, v{vl}')
    k(f's_lshl_b32 s3, s{sw}, 12')
    k(f'v_add_u32 v{vd}, s3, v{vl16}')
    sm0, skv = k.s(), k.s()
    k(f's_mov_b32 s{sm0}, s3')
    k(f's_lshl_b32 s3, s{sh}, 6')
    k(f's_add_u32 s3, s3, s{smt}')
    k('s_lshl_b32 s3, s3, 11')
    k(f'v_add_u32 v{vq}, s3, v{vl16}')
    k('s_waitcnt lgkmcnt(0)')
    qkv = k.s(4)
    k(f's_lshl_b32 s3, s{sh}, 18')
    k(f's_add_u32 s3, s3, {KV}')
    k(f's_add_u32 s{qkv}, s{ws}, s3')
    k(f's_addc_u32 s{qkv + 1}, s{ws + 1}, 0')
    k(f's_mov_b32 s{qkv + 2}, {64 * 4096}')
    k(f's_mov_b32 s{qkv + 3}, 0x00020000')
    qq = srd_from(k, ws, 4 * MB, QO)
    Q = k.v(8, 4)
    Cm = k.v(16, 4)
    Sb = [k.v(16, 4), k.v(16, 4)]
    P = k.v(8, 4)
    O = k.v(16, 4)
    L = k.v(4, 4)
    ones = k.v(4, 4)
    Kb = [k.v(8, 4), k.v(8, 4)]
    Vb = [k.v(8, 4), k.v(8, 4)]
    vcur, vnxt, t, mx = k.v(), k.v(), k.v(), k.v()

    def dma():
        return [f's_mov_b32 m0, s{sm0}'] + \
               [f'buffer_load_dwordx4 v{vd}, {sr(qkv, 4)}, s{skv} offen offset:{p * 1024} lds' for p in range(4)] + \
               [f's_add_u32 s{skv}, s{skv}, 32768', f's_add_u32 s{sm0}, s{sm0}, 32768', f's_and_b32 s{sm0}, s{sm0}, {NR * 32768 - 1}']
    k(f's_mov_b32 s{skv}, 0')
    k(f'buffer_load_dwordx4 {vr(Q, 4)}, v{vq}, {sr(qq, 4)}, 0 offen')
    k(f'buffer_load_dwordx4 {vr(Q + 4, 4)}, v{vq}, {sr(qq, 4)}, 0 offen offset:1024')
    for c in range(NR - 1):
        for x in dma():
            k(x)
    qo = srd_from(k, ws, 4 * MB, OO)
    vo = vq
    k(f's_lshl_b32 s3, s{smt}, 5')
    k(f's_add_u32 s3, s3, s{sh}')
    k('s_lshl_b32 s3, s3, 11')
    k(f'v_add_u32 v{vo}, s3, v{vl16}')
    k(f'v_lshrrev_b32 v{t}, 2, v{vl}')
    k(f'v_xor_b32 v{t}, v{t}, v{vl}')
    k(f'v_and_b32 v{t}, 4, v{t}')
    k(f'v_cmp_eq_u32 vcc, 0, v{t}')
    k(f'v_mov_b32 v{t}, {hex(ONES)}')
    k(f'v_cndmask_b32 v{ones}, 0, v{t}, vcc')
    for i in range(1, 4):
        k(f'v_mov_b32 v{ones + i}, v{ones}')
    for i in range(16):
        k(f'v_mov_b32 v{O + i}, 0')
    for i in range(4):
        k(f'v_mov_b32 v{L + i}, 0')
        k(f'v_mov_b32 v{P + 4 + i}, 0')
        k(f'v_mov_b32 v{Vb[1] + 4 + i}, 0')
    k(f'v_mov_b32 v{vcur}, v{vl16}')
    k(f'v_add_u32 v{vnxt}, 32768, v{vl16}')
    if prio:
        lab = k.label('prio')
        k(f's_cmp_lt_u32 s{sw}, 4')
        k(f's_cbranch_scc1 {lab}')
        k('s_setprio 1')
        k(f'{lab}:')
    k(f's_waitcnt vmcnt({4 * (NR - 2)})')
    k('s_barrier')
    k(f'ds_read_b128 {vr(Kb[0], 4)}, v{vcur}')
    k(f'ds_read_b128 {vr(Kb[0] + 4, 4)}, v{vcur} offset:1024')
    k(f'ds_read_b128 {vr(Kb[1], 4)}, v{vcur} offset:4096')
    k(f'ds_read_b128 {vr(Kb[1] + 4, 4)}, v{vcur} offset:5120')
    k(f'ds_read_b128 {vr(Vb[0], 4)}, v{vcur} offset:2048')
    k(f'ds_read_b128 {vr(Vb[0] + 4, 4)}, v{vcur} offset:3072')
    k('s_waitcnt lgkmcnt(4)')
    k(f'{M32} {vr(Sb[0], 16)}, {vr(Kb[0], 4)}, {vr(Q, 4)}, 0')
    k(f'{M32} {vr(Sb[0], 16)}, {vr(Kb[0] + 4, 4)}, {vr(Q + 4, 4)}, {vr(Sb[0], 16)}')
    max16(k, mx, Sb[0])
    xhalf_max(k, mx, t)
    for i in range(16):
        k(f'v_sub_f32 v{Sb[0] + i}, v{Sb[0] + i}, v{mx}')
        k(f'v_sub_f32 v{Cm + i}, 0, v{mx}')

    mark(k, 0)
    loop = k.label('loop')
    k(f'{loop}:')
    for ii in range(8):
        s, sn = Sb[ii & 1], Sb[(ii + 1) & 1]
        kn, kw = Kb[(ii + 1) & 1], Kb[ii & 1]
        vc, vw = Vb[ii & 1], Vb[(ii + 1) & 1]
        ex = lambda a, b: [k(f'v_exp_f32 v{s + i}, v{s + i}') for i in range(a, b)]
        cv = lambda a, b: [k(f'v_cvt_pk_bf16_f32 v{P + i}, v{s + 2 * i}, v{s + 2 * i + 1}') for i in range(a, b)]
        rd = lambda dst, tile, off: k(f'ds_read_b128 {vr(dst, 4)}, v{vcur if tile < 8 else vnxt} offset:{(tile % 8) * 4096 + off}')
        d = dma() if ii == 6 else []
        k('s_waitcnt lgkmcnt(0)')
        k(f'{M32} {vr(sn, 16)}, {vr(kn, 4)}, {vr(Q, 4)}, {vr(Cm, 16)}')
        if ii == 6:
            k(f's_waitcnt vmcnt({4 * (NR - 3)})')
            k('s_barrier')
            k(d[0])
        ex(0, 4)
        k(f'{M32} {vr(O, 16)}, {vr(vw + 4, 4)}, {vr(P + 4, 4)}, {vr(O, 16)}')
        rd(vw, ii + 1, 2048)
        rd(vw + 4, ii + 1, 3072)
        if d:
            k(d[1])
        cv(0, 2)
        ex(4, 6)
        k(f'{M16} {vr(L, 4)}, {vr(ones, 4)}, {vr(P + 4, 4)}, {vr(L, 4)}')
        if d:
            k(d[2])
        ex(6, 8)
        cv(2, 4)
        k(f'{M32} {vr(sn, 16)}, {vr(kn + 4, 4)}, {vr(Q + 4, 4)}, {vr(sn, 16)}')
        rd(kw, ii + 2, 0)
        rd(kw + 4, ii + 2, 1024)
        if d:
            k(d[3])
        ex(8, 12)
        k(f'{M32} {vr(O, 16)}, {vr(vc, 4)}, {vr(P, 4)}, {vr(O, 16)}')
        if d:
            for x in d[4:]:
                k(x)
        if ii == 7:
            k(f'v_mov_b32 v{vcur}, v{vnxt}')
            k(f'v_add_u32 v{vnxt}, 32768, v{vnxt}')
            k(f'v_and_b32 v{vnxt}, {NR * 32768 - 1}, v{vnxt}')
            k(f's_cmp_lg_u32 s{skv}, {(8 + NR - 1) * 32768}')
        cv(4, 6)
        ex(12, 14)
        k(f'{M16} {vr(L, 4)}, {vr(ones, 4)}, {vr(P, 4)}, {vr(L, 4)}')
        ex(14, 16)
        cv(6, 8)
    k(f's_cbranch_scc1 {loop}')
    mark(k, 1)
    k(f'{M32} {vr(O, 16)}, {vr(Vb[1] + 4, 4)}, {vr(P + 4, 4)}, {vr(O, 16)}')
    k(f'{M16} {vr(L, 4)}, {vr(ones, 4)}, {vr(P + 4, 4)}, {vr(L, 4)}')
    fb, fin = k.label('fallback'), k.label('fin')
    k(f'v_add_f32 v{t}, abs(v{O}), abs(v{O + 1})')
    for i in range(2, 16):
        k(f'v_add_f32 v{t}, v{t}, abs(v{O + i})')
    k(f'v_mul_f32 v{mx}, {hexf(2.0 ** 126 / limit)}, v{L}')
    k(f'v_add_f32 v{t}, v{t}, v{mx}')
    k(f'v_cmp_ngt_f32 vcc, {hexf(2.0 ** 126)}, v{t}')
    k(f's_cbranch_vccnz {fb}')
    k(f'{fin}:')
    k(f'v_rcp_f32 v{L}, v{L}')
    k(f'v_mov_b32 v{L + 1}, v{L}')
    for i in range(8):
        k(f'v_pk_mul_f32 {vr(O + 2 * i, 2)}, {vr(O + 2 * i, 2)}, {vr(L, 2)}')
    pack(k, P, O, 8)
    k(f'buffer_store_dwordx4 {vr(P, 4)}, v{vo}, {sr(qo, 4)}, 0 offen')
    k(f'buffer_store_dwordx4 {vr(P + 4, 4)}, v{vo}, {sr(qo, 4)}, 0 offen offset:1024')
    finish(k)
    k(f'{fb}:')
    s = Sb[0]
    k(f'v_mov_b32 v{mx}, 0xff800000')
    k(f's_mov_b32 s{skv}, 0')
    l1, l2 = k.label('fb1'), k.label('fb2')
    k(f'{l1}:')
    k(f'buffer_load_dwordx4 {vr(Kb[0], 4)}, v{vl16}, {sr(qkv, 4)}, s{skv} offen')
    k(f'buffer_load_dwordx4 {vr(Kb[0] + 4, 4)}, v{vl16}, {sr(qkv, 4)}, s{skv} offen offset:1024')
    k(f's_add_u32 s{skv}, s{skv}, 4096')
    k('s_waitcnt vmcnt(0)')
    k(f'{M32} {vr(s, 16)}, {vr(Kb[0], 4)}, {vr(Q, 4)}, 0')
    k(f'{M32} {vr(s, 16)}, {vr(Kb[0] + 4, 4)}, {vr(Q + 4, 4)}, {vr(s, 16)}')
    max16(k, mx, s, mx)
    k(f's_cmp_lg_u32 s{skv}, {64 * 4096}')
    k(f's_cbranch_scc1 {l1}')
    xhalf_max(k, mx, t)
    for i in range(16):
        k(f'v_sub_f32 v{Cm + i}, 0, v{mx}')
        k(f'v_mov_b32 v{O + i}, 0')
    for i in range(4):
        k(f'v_mov_b32 v{L + i}, 0')
    k(f's_mov_b32 s{skv}, 0')
    k(f'{l2}:')
    k(f'buffer_load_dwordx4 {vr(Kb[0], 4)}, v{vl16}, {sr(qkv, 4)}, s{skv} offen')
    k(f'buffer_load_dwordx4 {vr(Kb[0] + 4, 4)}, v{vl16}, {sr(qkv, 4)}, s{skv} offen offset:1024')
    k(f'buffer_load_dwordx4 {vr(Vb[0], 4)}, v{vl16}, {sr(qkv, 4)}, s{skv} offen offset:2048')
    k(f'buffer_load_dwordx4 {vr(Vb[0] + 4, 4)}, v{vl16}, {sr(qkv, 4)}, s{skv} offen offset:3072')
    k(f's_add_u32 s{skv}, s{skv}, 4096')
    k('s_waitcnt vmcnt(0)')
    k(f'{M32} {vr(s, 16)}, {vr(Kb[0], 4)}, {vr(Q, 4)}, {vr(Cm, 16)}')
    k(f'{M32} {vr(s, 16)}, {vr(Kb[0] + 4, 4)}, {vr(Q + 4, 4)}, {vr(s, 16)}')
    for i in range(16):
        k(f'v_exp_f32 v{s + i}, v{s + i}')
    pack(k, P, s, 8)
    k(f'{M32} {vr(O, 16)}, {vr(Vb[0], 4)}, {vr(P, 4)}, {vr(O, 16)}')
    k(f'{M32} {vr(O, 16)}, {vr(Vb[0] + 4, 4)}, {vr(P + 4, 4)}, {vr(O, 16)}')
    k(f'{M16} {vr(L, 4)}, {vr(ones, 4)}, {vr(P, 4)}, {vr(L, 4)}')
    k(f'{M16} {vr(L, 4)}, {vr(ones, 4)}, {vr(P + 4, 4)}, {vr(L, 4)}')
    k(f's_cmp_lg_u32 s{skv}, {64 * 4096}')
    k(f's_cbranch_scc1 {l2}')
    k(f's_branch {fin}')
    return k
```

```python
from asmlib import *

S, D, H, F, FH = 2048, 1024, 32, 3584, 1792
MB = 1 << 20
XN, QO, KV, OO, HH, Z1, Z2, YY, WSP = 0, 4 * MB, 8 * MB, 16 * MB, 20 * MB, 24 * MB, 32 * MB, 40 * MB, 48 * MB
ST2 = 56 * MB
ST3 = 56 * MB + 256 * 1024
CS4 = 56 * MB + 512 * 1024
TJ = 57 * MB
A_X, A_WQKV, A_WO, A_WIN, A_WSP, A_BSP, A_WOUT, A_OUT, A_DBG, A_WS = 0, 8, 16, 32, 40, 48, 56, 64, 72, 80
ONES = 0x3f803f80
LOG2E = 1.4426950408889634


def start(k, ngrid):
    k.ns = 4
    k.nv = 1
    k.end = f'.L{k.name}_end'
    k(f's_cmp_ge_u32 s2, {ngrid}')
    k(f's_cbranch_scc1 {k.end}')


def finish(k):
    k(f'{k.end}:')
    k('s_endpgm')


def load_ptr(k, off):
    q = k.s(4)
    k(f's_load_dwordx2 {sr(q, 2)}, s[0:1], {off}')
    return q


def srd_fin(k, q, size, add=0):
    if add:
        k(f's_add_u32 s{q}, s{q}, {add}')
        k(f's_addc_u32 s{q + 1}, s{q + 1}, 0')
    k(f's_mov_b32 s{q + 2}, {size}')
    k(f's_mov_b32 s{q + 3}, 0x00020000')


def srd_from(k, base, size, add=0):
    q = k.s(4)
    k(f's_add_u32 s{q}, s{base}, {add}')
    k(f's_addc_u32 s{q + 1}, s{base + 1}, 0')
    k(f's_mov_b32 s{q + 2}, {size}')
    k(f's_mov_b32 s{q + 3}, 0x00020000')
    return q


def wave_lane(k):
    sw = k.s()
    vl = k.v()
    k(f'v_lshrrev_b32 v{vl}, 6, v0')
    k(f'v_readfirstlane_b32 s{sw}, v{vl}')
    k(f'v_and_b32 v{vl}, 63, v0')
    return sw, vl


def xhalf_add(k, v, t):
    k(f'v_mov_b32 v{t}, v{v}')
    k(f'v_permlane32_swap_b32 v{v}, v{t}')
    k(f'v_add_f32 v{v}, v{v}, v{t}')


def x16_add(k, v, t):
    k(f'v_mov_b32 v{t}, v{v}')
    k(f'v_permlane16_swap_b32 v{v}, v{t}')
    k(f'v_add_f32 v{v}, v{v}, v{t}')


def rnd_bf16(k, v):
    k(f'v_cvt_pk_bf16_f32 v{v}, v{v}, v{v}')
    k(f'v_and_b32 v{v}, 0xffff0000, v{v}')


def ln_stats(k, vs, vq, n, t):
    k(f'v_mul_f32 v{vs}, {hexf(1.0 / n)}, v{vs}')
    k(f'v_mul_f32 v{vq}, {hexf(1.0 / n)}, v{vq}')
    k(f'v_fma_f32 v{vq}, -v{vs}, v{vs}, v{vq}')
    k(f'v_max_f32 v{vq}, 0, v{vq}')
    rnd_bf16(k, vs)
    rnd_bf16(k, vq)
    k(f'v_add_f32 v{vq}, {hexf(1e-5)}, v{vq}')
    rnd_bf16(k, vq)
    k(f'v_sqrt_f32 v{vq}, v{vq}')
    rnd_bf16(k, vq)
```

```python
from common import *


def R(kind, b, n=1):
    return (vr if kind == 'v' else ar)(b, n)


class Gemm:
    def __init__(self, k, NT, nsteps, NS, SS, G=1, act_kind='a', wtf_kind='a', swap=(), loop=True, bar_after=1,
                 lds_base=0):
        self.k = k
        self.NT, self.nsteps, self.NS, self.SS, self.G = NT, nsteps, NS, SS, G
        self.P = SS // 4096
        assert SS % 4096 == 0
        self.swap = set(swap)
        self.loop = loop
        self.bar_after = bar_after
        self.lds_base = lds_base
        self.ak, self.wk = act_kind, wtf_kind
        self.acc = k.v(16 * NT, 4)
        self.act = (k.a if act_kind == 'a' else k.v)(16 * NS, 4)
        self.wtf = (k.a if wtf_kind == 'a' else k.v)(2 * G * NT * 4, 4)
        self.s_ka = k.s()
        self.s_kb = k.s()
        self.s_ldsw = k.s()
        self.v_act = k.v()
        self.v_dma = []
        self.rd_base = {}
        self._rd_win = {}
        self.tail_hook = None
        self.loop_hook = None

    def prep_read_regs(self):
        k = self.k
        for st in range(self.NS):
            for ks in range(4):
                for nt in range(self.NT):
                    for t in range(2):
                        key, imm = self.rd(ks, nt, t)
                        w = (self.lds_base + st * self.SS + imm) // 65536
                        if (key, w) not in self._rd_win:
                            if w == 0:
                                self._rd_win[(key, w)] = self.rd_base[key]
                            else:
                                r = k.v()
                                k(f'v_add_u32 v{r}, {w * 65536}, v{self.rd_base[key]}')
                                self._rd_win[(key, w)] = r

    def frag(self, ph, g, nt):
        return self.wtf + ((ph & 1) * self.G * self.NT + g * self.NT + nt) * 4

    def read_ins(self, u, ks, nt, t):
        key, imm = self.rd(ks, nt, t)
        a = self.lds_base + (u % self.NS) * self.SS + imm
        ph, g = ks // self.G, ks % self.G
        PH = 4 // self.G
        gph = u * PH + ph
        d = self.frag(gph, g, nt) + 2 * t
        return f'ds_read_b64_tr_b16 {R(self.wk, d, 2)}, v{self._rd_win[(key, a // 65536)]} offset:{a % 65536}'

    def mfma(self, u, ks, nt):
        ph, g = ks // self.G, ks % self.G
        PH = 4 // self.G
        w = R(self.wk, self.frag(u * PH + ph, g, nt), 4)
        a = R(self.ak, self.act + (u % self.NS) * 16 + ks * 4, 4)
        c = vr(self.acc + nt * 16, 16)
        if nt in self.swap:
            return f'v_mfma_f32_32x32x16_bf16 {c}, {a}, {w}, {c}'
        return f'v_mfma_f32_32x32x16_bf16 {c}, {w}, {a}, {c}'

    def load_list(self, u):
        acts = []
        for ks in range(4):
            d = self.act + (u % self.NS) * 16 + ks * 4
            acts.append([f'buffer_load_dwordx4 {R(self.ak, d, 4)}, v{self.v_act}, {sr(self.act_srd, 4)}, s{self.s_ka} offen offset:{ks * 1024}'])
        dmas = []
        for p in range(self.P):
            ln = []
            if p % 4 == 0:
                ln.append(f's_add_u32 m0, s{self.s_ldsw}, {self.lds_base + (u % self.NS) * self.SS + p * 1024}')
            va = self.v_dma[p] if len(self.v_dma) > 1 else self.v_dma[0]
            ln.append(f'buffer_load_dwordx4 v{va}, {sr(self.wt_srd, 4)}, s{self.s_kb} offen offset:{(p % 4) * 1024} lds')
            dmas.append(ln)
        n = 4 + self.P
        pos = [((q + 1) * n) // 4 - 1 for q in range(4)]
        out, di = [], 0
        for i in range(n):
            if i in pos:
                out.append(('act', pos.index(i), acts[pos.index(i)]))
            else:
                out.append(('dma', di, dmas[di]))
                di += 1
        return out

    def advance(self):
        return [f's_add_u32 s{self.s_ka}, s{self.s_ka}, {self.act_step}',
                f's_add_u32 s{self.s_kb}, s{self.s_kb}, {self.wt_step}']

    def issue_prologue_loads(self):
        k = self.k
        self.vm = []
        k(f's_mov_b32 s{self.s_ka}, 0')
        k(f's_mov_b32 s{self.s_kb}, 0')
        for u in range(self.NS):
            for kind, i, ln in self.load_list(u):
                for x in ln:
                    k(x)
                self.vm.append(('step', u))
            for x in self.advance():
                k(x)

    def vm_wait(self, pred):
        last = -1
        for i, t in enumerate(self.vm):
            if pred(t):
                last = i
        if last < 0:
            return []
        n = len(self.vm) - 1 - last
        self.vm = self.vm[last + 1:]
        assert n <= 63
        return [f's_waitcnt vmcnt({n})']

    def lg_wait(self, tag):
        last = -1
        for i, t in enumerate(self.lg):
            if tag is None or t == tag:
                last = i
        if last < 0:
            return []
        n = len(self.lg) - 1 - last
        if n > 15:
            n = 15
            last = len(self.lg) - 1 - n
        self.lg = self.lg[last + 1:]
        return [f's_waitcnt lgkmcnt({n})']

    def phase(self, u, ph, nxt, barrier, loads, gap0, per_u):
        G, NT = self.G, self.NT
        out = []
        ms = [(ph * G + g, nt) for g in range(G) for nt in range(NT)]
        reads = []
        if nxt is not None:
            reads = [(nxt[0], nxt[1] * G + g, nt, t) for g in range(G) for nt in range(NT) for t in range(2)]
        nm = len(ms)
        first = self.bar_after - 1 if barrier else 0
        first = max(first, 0)
        gaps = list(range(first, nm - 1)) if nm - 1 - first >= 2 else list(range(first, nm))
        per = [len(reads) // len(gaps) + (1 if i < len(reads) % len(gaps) else 0) for i in range(len(gaps))]
        ri = 0
        if barrier and self.bar_after == 0:
            out += self.lg_wait(None) + self.vm_wait(lambda t: t == ('step', u + 1)) + ['s_barrier']
        for i, (ks, nt) in enumerate(ms):
            out += self.lg_wait((u, ks, nt))
            out.append(self.mfma(u, ks, nt))
            if barrier and i == self.bar_after - 1:
                out += self.lg_wait(None) + self.vm_wait(lambda t: t == ('step', u + 1)) + ['s_barrier']
            pre, post = [], []
            for kind, idx, ln, tag in loads.get(gap0 + i, []):
                pre += ln[:-1]
                post.append((ln[-1], tag))
                if len(ln) > 1 and len(post) > 1:
                    raise ValueError('m0 update must be first in gap')
            out += pre
            if i in gaps:
                for _ in range(per[gaps.index(i)]):
                    r = reads[ri]
                    ri += 1
                    out.append(self.read_ins(*r))
                    self.lg.append((r[0], r[1], r[2]))
            for ln, tag in post:
                out.append(ln)
                if tag is not None:
                    self.vm.append(tag)
            if self.loop_hook:
                out += self.loop_hook(per_u, gap0 + i)
        return out

    def period(self, u):
        G, NT, NS = self.G, self.NT, self.NS
        PH = 4 // G
        nm = 4 * NT
        npp = G * NT
        loads = {}
        if u + NS < self.nsteps:
            ll = self.load_list(u + NS)
            first = max(self.bar_after - 1, 0)
            span = nm - first
            for i, (kind, idx, ln) in enumerate(ll):
                g = first + (i * span) // len(ll)
                if kind == 'act' and idx >= 4 - G:
                    need = (idx - (4 - G) + 1) * NT - 1
                    assert g >= need, (g, need)
                if loads.get(g) and len(ln) > 1:
                    assert all(e[0] == 'act' for e in loads[g])
                    loads[g].insert(0, (kind, idx, ln, ('step', u + NS)))
                else:
                    loads.setdefault(g, []).append((kind, idx, ln, ('step', u + NS)))
            lastg = max(loads)
            for x in self.advance():
                loads[lastg].append(('adv', 0, [x], None))
        if self.tail_hook:
            for g in range(nm):
                for ln, tag in self.tail_hook(u, g):
                    loads.setdefault(g, []).append(('x', 0, [ln], tag))
        out = []
        last = u == self.nsteps - 1
        out += self.phase(u, PH - 1, None if last else (u + 1, 0), not last, loads, 0, u)
        if not last:
            for ph in range(PH - 1):
                out += self.phase(u + 1, ph, (u + 1, ph + 1), False, loads, (ph + 1) * npp, u)
        return out

    def main(self):
        k = self.k
        G, NT, NS = self.G, self.NT, self.NS
        PH = 4 // G
        self.lg = []
        for x in self.vm_wait(lambda t: t == ('step', 0)):
            k(x)
        k('s_barrier')
        mark(k, 0)
        for g in range(G):
            for nt in range(NT):
                for t in range(2):
                    k(self.read_ins(0, g, nt, t))
                    self.lg.append((0, g, nt))
        for ph in range(PH - 1):
            for x in self.phase(0, ph, (0, ph + 1), False, {}, (ph + 1) * G * NT, -1):
                k(x)
        per = [self.period(u) for u in range(self.nsteps)]
        nl = self.nsteps - NS
        u = 0
        if self.loop and nl >= 2 * NS:
            r = nl % NS
            while r + 2 * NS <= nl and per[r:r + NS] != per[r + NS:r + 2 * NS]:
                r += NS
            nit = (nl - r) // NS
            for it in range(nit):
                assert per[r + it * NS: r + (it + 1) * NS] == per[r:r + NS]
            for u in range(r):
                for x in per[u]:
                    k(x)
            lab = k.label('loop')
            k(f'{lab}:')
            for u in range(r, r + NS):
                for x in per[u]:
                    k(x)
            k(f's_cmp_lg_u32 s{self.s_ka}, {self.nsteps * self.act_step}')
            k(f's_cbranch_scc1 {lab}')
            u = r + nit * NS
        for uu in range(u, self.nsteps):
            for x in per[uu]:
                k(x)
        mark(k, 1)

    def zero_acc(self):
        for i in range(16 * self.NT):
            self.k(f'v_mov_b32 v{self.acc + i}, 0')


def rd_base_128(k, vl, porder):
    b0, b1, t = k.v(), k.v(), k.v()
    k(f'v_lshrrev_b32 v{b0}, 5, v{vl}')
    k(f'v_lshlrev_b32 v{b0}, {9 if porder else 10}, v{b0}')
    k(f'v_bfe_u32 v{t}, v{vl}, 2, 2')
    k(f'v_lshl_add_u32 v{b0}, v{t}, 7, v{b0}')
    k(f'v_bfe_u32 v{t}, v{vl}, 3, 1')
    k(f'v_lshl_add_u32 v{b0}, v{t}, 6, v{b0}')
    k(f'v_bfe_u32 v{t}, v{vl}, 4, 1')
    k(f'v_lshl_add_u32 v{b0}, v{t}, 5, v{b0}')
    k(f'v_and_b32 v{t}, 3, v{vl}')
    k(f'v_lshl_add_u32 v{b0}, v{t}, 3, v{b0}')
    k(f'v_xor_b32 v{b1}, 64, v{b0}')
    return b0, b1


def dma_base_128(k, vl, sw, ldb):
    v, t = k.v(), k.v()
    k(f'v_lshrrev_b32 v{v}, 3, v{vl}')
    k(f's_lshl_b32 s3, s{sw}, 4')
    k(f'v_add_u32 v{v}, s3, v{v}')
    k(f'v_mul_u32_u24 v{v}, {ldb}, v{v}')
    k(f'v_bfe_u32 v{t}, v{vl}, 4, 1')
    k(f'v_lshlrev_b32 v{t}, 2, v{t}')
    k(f'v_xor_b32 v{t}, v{t}, v{vl}')
    k(f'v_and_b32 v{t}, 7, v{t}')
    k(f'v_lshl_add_u32 v{v}, v{t}, 4, v{v}')
    return v
```

```python
import sys
from attn import *
def v1():
    return [k1_ln(), k2_qkv(), k3_attn(), k47(4), k5_in(), k5b_ln3(), k6_sp(), k47(7)]
if __name__ == '__main__':
    PROF['on'] = 'prof' in sys.argv[1]
    out = sys.argv[1] if len(sys.argv) > 1 else 'v1.s'
    open(out, 'w').write(build_file(v1(), verbose=int(sys.argv[2]) if len(sys.argv) > 2 else 1))
```

```python
from gemm import *


class SideJobs:
    def __init__(self, k, sw, vl, ws):
        self.k, self.sw, self.vl, self.ws = k, sw, vl, ws

    def ptrs(self):
        k = self.k
        self.q_sp = load_ptr(k, A_WSP)
        self.q_win = load_ptr(k, A_WIN)

    def setup(self):
        k, sw, vl = self.k, self.sw, self.vl
        srd_fin(k, self.q_sp, S * S * 2)
        srd_fin(k, self.q_win, D * F * 2)
        self.q_spo = srd_from(k, self.ws, 8 * MB, WSP)
        self.q_cs = srd_from(k, self.ws, F * 16, CS4)
        self.v_sp, self.v_spo, self.v_win = k.v(), k.v(), k.v()
        t = k.v()
        k(f'v_and_b32 v{t}, 7, v{vl}')
        k('s_lshl_b32 s3, s2, 3')
        k(f'v_add_u32 v{self.v_sp}, s3, v{t}')
        k(f'v_lshlrev_b32 v{self.v_sp}, 12, v{self.v_sp}')
        k(f'v_lshrrev_b32 v{self.v_spo}, 3, v{vl}')
        k(f's_lshl_b32 s3, s{sw}, 5')
        k(f'v_add_u32 v{self.v_spo}, s3, v{self.v_spo}')
        k(f'v_lshl_add_u32 v{self.v_sp}, v{self.v_spo}, 4, v{self.v_sp}')
        k(f'v_lshlrev_b32 v{self.v_spo}, 9, v{self.v_spo}')
        k(f'v_lshl_add_u32 v{self.v_spo}, v{t}, 4, v{self.v_spo}')
        k('s_and_b32 s3, s2, 3')
        k('s_lshl_b32 s3, s3, 7')
        k(f'v_add_u32 v{self.v_spo}, s3, v{self.v_spo}')
        k('s_lshr_b32 s3, s2, 2')
        k('s_lshl_b32 s3, s3, 17')
        k(f'v_add_u32 v{self.v_spo}, s3, v{self.v_spo}')
        k('s_and_b32 s3, s2, 3')
        k('s_lshl_b32 s3, s3, 5')
        k(f's_add_u32 s3, s3, s{sw}')
        k('s_lshl_b32 s3, s3, 3')
        k(f'v_lshrrev_b32 v{self.v_win}, 3, v{vl}')
        k(f'v_add_u32 v{self.v_win}, s3, v{self.v_win}')
        k(f'v_mul_u32_u24 v{self.v_win}, {F * 2}, v{self.v_win}')
        k(f'v_lshl_add_u32 v{self.v_win}, v{t}, 4, v{self.v_win}')
        k('s_lshr_b32 s3, s2, 2')
        k('s_lshl_b32 s3, s3, 7')
        k(f'v_add_u32 v{self.v_win}, s3, v{self.v_win}')
        k('s_cmp_lt_u32 s2, 224')
        k(f's_cselect_b32 s{self.q_win + 2}, s{self.q_win + 2}, 0')
        k(f's_cselect_b32 s{self.q_cs + 2}, s{self.q_cs + 2}, 0')
        self.s_o = [k.s() for _ in range(3)]
        self.s_w = [k.s() for _ in range(3)]
        for j in range(3):
            k(f's_mov_b32 s{self.s_o[j]}, {(j + 1) * 4096}')
            k(f's_mov_b32 s{self.s_w[j]}, {(j + 1) * 64 * F * 2}')
        self.r_sp = k.v(16, 4)
        self.r_win = k.v(16, 4)

    def loads_sp(self):
        return [f'buffer_load_dwordx4 {vr(self.r_sp + 4 * j, 4)}, v{self.v_sp}, {sr(self.q_sp, 4)}, 0 offen offset:{j * 128}'
                for j in range(4)]

    def loads_win(self):
        return [f'buffer_load_dwordx4 {vr(self.r_win + 4 * j, 4)}, v{self.v_win}, {sr(self.q_win, 4)}, '
                + ('0' if j == 0 else f's{self.s_w[j - 1]}') + ' offen' for j in range(4)]

    def stores_sp(self):
        return [f'buffer_store_dwordx4 {vr(self.r_sp + 4 * j, 4)}, v{self.v_spo}, {sr(self.q_spo, 4)}, '
                + ('0' if j == 0 else f's{self.s_o[j - 1]}') + ' offen' for j in range(4)]

    def colsum(self, lds_off):
        k, sw, vl = self.k, self.sw, self.vl
        a = k.v(8, 4)
        t = k.v()
        slo, shi = k.s(), k.s()
        k(f's_mov_b32 s{slo}, 0x00003f80')
        k(f's_mov_b32 s{shi}, 0x3f800000')
        for j in range(4):
            for d in range(4):
                for e, s in ((0, slo), (1, shi)):
                    c = '0' if j == 0 else f'v{a + 2 * d + e}'
                    k(f'v_dot2_f32_bf16 v{a + 2 * d + e}, v{self.r_win + 4 * j + d}, s{s}, {c}')
        for i in range(8):
            k(f'v_add_f32_dpp v{a + i}, v{a + i}, v{a + i} row_ror:8 row_mask:0xf bank_mask:0xf')
        for i in range(8):
            x16_add(k, a + i, t)
        for i in range(8):
            xhalf_add(k, a + i, t)
        k(f'v_and_b32 v{t}, 7, v{vl}')
        k(f'v_lshlrev_b32 v{t}, 5, v{t}')
        k(f's_lshl_b32 s3, s{sw}, 8')
        k(f'v_add_u32 v{t}, s3, v{t}')
        k(f'ds_write_b128 v{t}, {vr(a, 4)} offset:{lds_off}')
        k(f'ds_write_b128 v{t}, {vr(a + 4, 4)} offset:{lds_off + 16}')
        k('s_waitcnt lgkmcnt(0)')
        k('s_barrier')
        skip = k.label('csskip')
        k(f's_cmp_lg_u32 s{sw}, 0')
        k(f's_cbranch_scc1 {skip}')
        k(f'v_lshlrev_b32 v{t}, 2, v{vl}')
        for i in range(8):
            k(f'ds_read_b32 v{a + i}, v{t} offset:{lds_off + i * 256}')
        k('s_lshr_b32 s3, s2, 2')
        k('s_lshl_b32 s3, s3, 10')
        k(f'v_lshl_add_u32 v{t}, v{vl}, 4, s3')
        k('s_and_b32 s3, s2, 3')
        k('s_lshl_b32 s3, s3, 2')
        k('s_waitcnt lgkmcnt(0)')
        for i in range(1, 8):
            k(f'v_add_f32 v{a}, v{a}, v{a + i}')
        k(f'buffer_store_dword v{a}, v{t}, {sr(self.q_cs, 4)}, s3 offen')
        k(f'{skip}:')


def k1_ln(side=True):
    k = Kernel('k1_ln_kernel', 256, 512, 4096)
    start(k, 256)
    qx = load_ptr(k, A_X)
    ws = k.s(2)
    k(f's_load_dwordx2 {sr(ws, 2)}, s[0:1], {A_WS}')
    sw, vl = wave_lane(k)
    sj = SideJobs(k, sw, vl, ws) if side else None
    if sj:
        sj.ptrs()
    va, vo, t, row = k.v(), k.v(), k.v(), k.v()
    k(f'v_and_b32 v{row}, 7, v{vl}')
    k('s_lshl_b32 s3, s2, 3')
    k(f'v_add_u32 v{va}, s3, v{row}')
    k(f'v_lshlrev_b32 v{va}, 11, v{va}')
    k(f'v_lshrrev_b32 v{vo}, 3, v{vl}')
    k(f's_lshl_b32 s3, s{sw}, 4')
    k(f'v_add_u32 v{vo}, s3, v{vo}')
    k(f'v_lshl_add_u32 v{va}, v{vo}, 4, v{va}')
    k('s_waitcnt lgkmcnt(0)')
    srd_fin(k, qx, S * D * 2)
    x = k.v(8, 4)
    k(f'buffer_load_dwordx4 {vr(x, 4)}, v{va}, {sr(qx, 4)}, 0 offen')
    k(f'buffer_load_dwordx4 {vr(x + 4, 4)}, v{va}, {sr(qx, 4)}, 0 offen offset:128')
    qo = srd_from(k, ws, 4 * MB, XN)
    k(f'v_lshlrev_b32 v{vo}, 9, v{vo}')
    k(f'v_lshl_add_u32 v{vo}, v{row}, 4, v{vo}')
    k('s_and_b32 s3, s2, 3')
    k('s_lshl_b32 s3, s3, 7')
    k(f'v_add_u32 v{vo}, s3, v{vo}')
    k('s_lshr_b32 s3, s2, 2')
    k('s_lshl_b32 s3, s3, 16')
    k(f'v_add_u32 v{vo}, s3, v{vo}')
    s4k, sone = k.s(), k.s()
    k(f's_mov_b32 s{s4k}, 4096')
    k(f's_mov_b32 s{sone}, {hex(ONES)}')
    nextra = 0
    if sj:
        sj.setup()
        for ln in sj.loads_sp() + sj.loads_win():
            k(ln)
        nextra = 8
    st = k.v(2, 2)
    k(f's_waitcnt vmcnt({nextra})')
    for d in range(8):
        k(f'v_dot2_f32_bf16 v{st}, v{x + d}, s{sone}, ' + ('0' if d == 0 else f'v{st}'))
        k(f'v_dot2_f32_bf16 v{st + 1}, v{x + d}, v{x + d}, ' + ('0' if d == 0 else f'v{st + 1}'))
    for i in range(2):
        k(f'v_add_f32_dpp v{st + i}, v{st + i}, v{st + i} row_ror:8 row_mask:0xf bank_mask:0xf')
    for i in range(2):
        x16_add(k, st + i, t)
    for i in range(2):
        xhalf_add(k, st + i, t)
    k(f'v_lshlrev_b32 v{row}, 6, v{row}')
    k(f's_lshl_b32 s3, s{sw}, 3')
    k(f'v_add_u32 v{t}, s3, v{row}')
    k(f'ds_write_b64 v{t}, {vr(st, 2)}')
    k('s_waitcnt lgkmcnt(0)')
    k('s_barrier')
    p = k.v(16, 4)
    for i in range(4):
        k(f'ds_read_b128 {vr(p + 4 * i, 4)}, v{row} offset:{16 * i}')
    f = k.v(16, 4)
    for d in range(8):
        k(f'v_lshlrev_b32 v{f + 2 * d}, 16, v{x + d}')
        k(f'v_and_b32 v{f + 2 * d + 1}, 0xffff0000, v{x + d}')
    k('s_waitcnt lgkmcnt(0)')
    for i in (8, 4, 2):
        for j in range(0, i, 2):
            k(f'v_pk_add_f32 {vr(p + j, 2)}, {vr(p + j, 2)}, {vr(p + j + i, 2)}')
    ln_stats(k, p, p + 1, D, t)
    k(f'v_rcp_f32 v{p + 2}, v{p + 1}')
    k(f'v_mov_b32 v{p + 1}, v{p}')
    k(f'v_mov_b32 v{p + 3}, v{p + 2}')
    for d in range(8):
        k(f'v_pk_add_f32 {vr(f + 2 * d, 2)}, {vr(f + 2 * d, 2)}, {vr(p, 2)} neg_lo:[0,1] neg_hi:[0,1]')
    for d in range(8):
        k(f'v_cvt_pk_bf16_f32 v{x + d}, v{f + 2 * d}, v{f + 2 * d + 1}')
    for d in range(8):
        k(f'v_lshlrev_b32 v{f + 2 * d}, 16, v{x + d}')
        k(f'v_and_b32 v{f + 2 * d + 1}, 0xffff0000, v{x + d}')
    for d in range(8):
        k(f'v_pk_mul_f32 {vr(f + 2 * d, 2)}, {vr(f + 2 * d, 2)}, {vr(p + 2, 2)}')
    for d in range(8):
        k(f'v_cvt_pk_bf16_f32 v{x + d}, v{f + 2 * d}, v{f + 2 * d + 1}')
    k(f'buffer_store_dwordx4 {vr(x, 4)}, v{vo}, {sr(qo, 4)}, 0 offen')
    k(f'buffer_store_dwordx4 {vr(x + 4, 4)}, v{vo}, {sr(qo, 4)}, s{s4k} offen')
    if sj:
        k('s_waitcnt vmcnt(6)')
        for ln in sj.stores_sp():
            k(ln)
        k('s_waitcnt vmcnt(6)')
        sj.colsum(1024)
    finish(k)
    return k


def tile_ids(k, mbits, nmul):
    sm, sn = k.s(), k.s()
    lo = 4 - mbits
    k(f's_and_b32 s{sm}, s2, {(1 << mbits) - 1}')
    k(f's_lshl_b32 s{sm}, s{sm}, {lo}')
    k(f's_bfe_u32 s3, s2, {3 | (lo << 16)}')
    k(f's_add_u32 s{sm}, s{sm}, s3')
    k(f's_bfe_u32 s{sn}, s2, {mbits | ((3 - mbits) << 16)}')
    k(f's_mul_i32 s{sn}, s{sn}, {nmul}')
    k(f's_lshr_b32 s3, s2, {3 + lo}')
    k(f's_add_u32 s{sn}, s{sn}, s3')
    return sm, sn


def gemm_common(k, g, sw, vl, sm, kblocks):
    smt = k.s()
    k(f's_lshl_b32 s{smt}, s{sm}, 2')
    k(f's_add_u32 s{smt}, s{smt}, s{sw}')
    k(f's_mul_i32 s3, s{smt}, {kblocks * 1024}')
    k(f'v_lshl_add_u32 v{g.v_act}, v{vl}, 4, s3')
    k(f's_mul_i32 s{g.s_ldsw}, s{sw}, {g.SS // 4}')
    g.act_step = 4096
    return smt


def pack(k, dst, src, n):
    for i in range(n):
        k(f'v_cvt_pk_bf16_f32 v{dst + i}, v{src + 2 * i}, v{src + 2 * i + 1}')


def k2_qkv(NS=4, **kw):
    SS = 24576
    k = Kernel('k2_qkv_kernel', 256, 256, NS * SS)
    start(k, 256)
    qw = load_ptr(k, A_WQKV)
    ws = k.s(2)
    k(f's_load_dwordx2 {sr(ws, 2)}, s[0:1], {A_WS}')
    sw, vl = wave_lane(k)
    sm, sn = tile_ids(k, 1, 4)
    g = Gemm(k, 6, 16, NS, SS, swap=(4, 5), **kw)
    smt = gemm_common(k, g, sw, vl, sm, 64)
    ldb = 3 * D * 2
    vb = dma_base_128(k, vl, sw, ldb)
    k(f's_lshl_b32 s3, s{sn}, 7')
    k(f'v_add_u32 v{vb}, s3, v{vb}')
    for p in range(6):
        b, pp = p >> 1, p & 1
        off = b * 2048 + pp * 8 * ldb - (p % 4) * 1024
        if off == 0:
            g.v_dma.append(vb)
        else:
            r = k.v()
            k(f'v_add_u32 v{r}, {off}, v{vb}')
            g.v_dma.append(r)
    g.wt_step = 64 * ldb
    k('s_waitcnt lgkmcnt(0)')
    srd_fin(k, qw, D * 3 * D * 2)
    g.wt_srd = qw
    g.act_srd = srd_from(k, ws, 4 * MB, XN)
    g.issue_prologue_loads()
    b0, b1 = rd_base_128(k, vl, False)
    g.rd_base = {0: b0, 1: b1}
    g.rd = lambda ks, nt, t: (nt & 1, ks * 6144 + (nt >> 1) * 2048 + t * 512)
    g.prep_read_regs()
    g.zero_acc()
    qq = srd_from(k, ws, 4 * MB, QO)
    qkv = srd_from(k, ws, 8 * MB, KV)
    vq, vk = k.v(), k.v()
    k(f's_lshl_b32 s3, s{sn}, 7')
    k(f's_add_u32 s3, s3, s{smt}')
    k('s_lshl_b32 s3, s3, 11')
    k(f'v_lshl_add_u32 v{vq}, v{vl}, 4, s3')
    k('s_lshl_b32 s3, s3, 1')
    k(f'v_lshl_add_u32 v{vk}, v{vl}, 4, s3')
    sq1, sk1, sc = k.s(), k.s(), k.s(2)
    k(f's_mov_b32 s{sq1}, {64 * 2048}')
    k(f's_mov_b32 s{sk1}, {64 * 4096}')
    c = 32 ** -0.5 * LOG2E
    k(f's_mov_b32 s{sc}, {hexf(c)}')
    k(f's_mov_b32 s{sc + 1}, {hexf(c)}')
    g.main()
    o = k.v(16, 4)
    for nt in range(6):
        a = g.acc + nt * 16
        d = o + (nt & 1) * 8
        if nt < 2:
            for i in range(8):
                k(f'v_pk_mul_f32 {vr(a + 2 * i, 2)}, {vr(a + 2 * i, 2)}, {sr(sc, 2)}')
        pack(k, d, a, 8)
        for j in range(2):
            if nt < 2:
                k(f'buffer_store_dwordx4 {vr(d + 4 * j, 4)}, v{vq}, {sr(qq, 4)}, ' + (f's{sq1}' if nt & 1 else '0') + f' offen offset:{j * 1024}')
            else:
                k(f'buffer_store_dwordx4 {vr(d + 4 * j, 4)}, v{vk}, {sr(qkv, 4)}, ' + (f's{sk1}' if nt & 1 else '0')
                  + f' offen offset:{j * 1024 + (2048 if nt >= 4 else 0)}')
    finish(k)
    return k


def k47(which, NS=4, G=2, **kw):
    SS = 8192
    k4 = which == 4
    K = D if k4 else FH
    k = Kernel('k4_wo_kernel' if k4 else 'k7_out_kernel', 256, 256, NS * SS)
    start(k, 256)
    qw = load_ptr(k, A_WO if k4 else A_WOUT)
    qio = load_ptr(k, A_X if k4 else A_OUT)
    ws = k.s(2)
    k(f's_load_dwordx2 {sr(ws, 2)}, s[0:1], {A_WS}')
    sw, vl = wave_lane(k)
    sm, sn = tile_ids(k, 2, 8)
    g = Gemm(k, 2, K // 64, NS, SS, G=G, **kw)
    smt = gemm_common(k, g, sw, vl, sm, K // 16)
    ldb = D * 2
    vb = dma_base_128(k, vl, sw, ldb)
    k(f's_lshl_b32 s3, s{sn}, 7')
    k(f'v_add_u32 v{vb}, s3, v{vb}')
    r = k.v()
    k(f'v_add_u32 v{r}, {8 * ldb - 1024}, v{vb}')
    g.v_dma = [vb, r]
    g.wt_step = 64 * ldb
    k('s_waitcnt lgkmcnt(0)')
    srd_fin(k, qw, K * D * 2)
    g.wt_srd = qw
    g.act_srd = srd_from(k, ws, S * K * 2, OO if k4 else YY)
    g.issue_prologue_loads()
    b0, b1 = rd_base_128(k, vl, True)
    g.rd_base = {0: b0, 1: b1}
    g.rd = lambda ks, nt, t: (nt, ks * 2048 + t * 1024)
    g.prep_read_regs()
    g.zero_acc()
    srd_fin(k, qio, S * D * 2)
    qh = srd_from(k, ws, 4 * MB, HH)
    vrm, vh, t = k.v(), k.v(), k.v()
    k(f'v_and_b32 v{vrm}, 31, v{vl}')
    k(f's_lshl_b32 s3, s{smt}, 5')
    k(f'v_add_u32 v{vrm}, s3, v{vrm}')
    if k4:
        vst = k.v()
        k(f'v_lshlrev_b32 v{vst}, 3, v{vrm}')
        k(f's_lshl_b32 s3, s{sn}, 14')
        k(f'v_add_u32 v{vst}, s3, v{vst}')
        qst = srd_from(k, ws, 256 * 1024, ST2)
        sone = k.s()
        k(f's_mov_b32 s{sone}, {hex(ONES)}')
    k(f'v_lshlrev_b32 v{vrm}, 11, v{vrm}')
    k(f'v_lshrrev_b32 v{t}, 5, v{vl}')
    k(f'v_lshl_add_u32 v{vrm}, v{t}, 4, v{vrm}')
    k(f's_lshl_b32 s3, s{sn}, 7')
    k(f'v_add_u32 v{vrm}, s3, v{vrm}')
    k(f's_lshl_b32 s3, s{smt}, 4')
    k(f's_add_u32 s3, s3, s{sn}')
    k('s_lshl_b32 s3, s3, 12')
    k(f'v_lshl_add_u32 v{vh}, v{vl}, 4, s3')
    res = k.v(16, 4)
    u0 = g.nsteps - NS

    def tail(u, gap):
        if u == u0 and gap in (1, 3, 5, 7):
            i = gap // 2
            if k4:
                return [(f'buffer_load_dwordx4 {vr(res + 4 * i, 4)}, v{vrm}, {sr(qio, 4)}, 0 offen offset:{32 * i}', 'res')]
            return [(f'buffer_load_dwordx4 {vr(res + 4 * i, 4)}, v{vh}, {sr(qh, 4)}, 0 offen offset:{1024 * i}', 'res')]
        return []
    g.tail_hook = tail
    g.main()
    for x in g.vm_wait(lambda t: t == 'res'):
        k(x)
    f = k.v(8, 4)
    if k4:
        st = k.v(2, 2)
        for i in range(4):
            k(f'v_permlane32_swap_b32 v{res + 4 * i}, v{res + 4 * i + 2}')
            k(f'v_permlane32_swap_b32 v{res + 4 * i + 1}, v{res + 4 * i + 3}')
    for i in range(4):
        a = g.acc + 8 * i
        rr = res + 4 * i
        for d in range(4):
            k(f'v_lshlrev_b32 v{f + 2 * d}, 16, v{rr + d}')
            k(f'v_and_b32 v{f + 2 * d + 1}, 0xffff0000, v{rr + d}')
        pack(k, rr, a, 4)
        for d in range(4):
            k(f'v_lshlrev_b32 v{a + 2 * d}, 16, v{rr + d}')
            k(f'v_and_b32 v{a + 2 * d + 1}, 0xffff0000, v{rr + d}')
        for d in range(4):
            k(f'v_pk_add_f32 {vr(a + 2 * d, 2)}, {vr(a + 2 * d, 2)}, {vr(f + 2 * d, 2)}')
        pack(k, rr, a, 4)
        if k4:
            k(f'buffer_store_dwordx4 {vr(rr, 4)}, v{vh}, {sr(qh, 4)}, 0 offen offset:{1024 * i}')
            for d in range(4):
                first = i == 0 and d == 0
                k(f'v_dot2_f32_bf16 v{st}, v{rr + d}, s{sone}, ' + ('0' if first else f'v{st}'))
                k(f'v_dot2_f32_bf16 v{st + 1}, v{rr + d}, v{rr + d}, ' + ('0' if first else f'v{st + 1}'))
        else:
            k(f'v_permlane32_swap_b32 v{rr}, v{rr + 2}')
            k(f'v_permlane32_swap_b32 v{rr + 1}, v{rr + 3}')
            k(f'buffer_store_dwordx4 {vr(rr, 4)}, v{vrm}, {sr(qio, 4)}, 0 offen offset:{32 * i}')
    if k4:
        xhalf_add(k, st, t)
        xhalf_add(k, st + 1, t)
        k('s_mov_b32 exec_hi, 0')
        k(f'buffer_store_dwordx2 {vr(st, 2)}, v{vst}, {sr(qst, 4)}, 0 offen')
    finish(k)
    return k


def gelu16(k, a, c0, c1, sv, tmp):
    for half in range(2):
        b = a + 8 * half
        for i in range(4):
            k(f'v_pk_mul_f32 {vr(tmp + 2 * i, 2)}, {vr(b + 2 * i, 2)}, {vr(b + 2 * i, 2)}')
        for i in range(4):
            k(f'v_pk_fma_f32 {vr(tmp + 2 * i, 2)}, {vr(tmp + 2 * i, 2)}, {vr(c1, 2)}, {vr(c0, 2)}')
        for i in range(4):
            k(f'v_pk_mul_f32 {vr(tmp + 2 * i, 2)}, {vr(tmp + 2 * i, 2)}, {vr(b + 2 * i, 2)}')
        for i in range(8):
            k(f'v_exp_f32 v{tmp + i}, v{tmp + i}')
        for i in range(4):
            k(f'v_pk_fma_f32 {vr(tmp + 2 * i, 2)}, {vr(tmp + 2 * i, 2)}, {vr(sv, 2)}, {vr(sv, 2)}')
        for i in range(8):
            k(f'v_rcp_f32 v{tmp + i}, v{tmp + i}')
        for i in range(4):
            k(f'v_pk_mul_f32 {vr(b + 2 * i, 2)}, {vr(b + 2 * i, 2)}, {vr(tmp + 2 * i, 2)}')


def k5_in(NS=4, **kw):
    SS = 28672
    k = Kernel('k5_in_kernel', 256, 256, NS * SS)
    start(k, 256)
    qw = load_ptr(k, A_WIN)
    ws = k.s(2)
    k(f's_load_dwordx2 {sr(ws, 2)}, s[0:1], {A_WS}')
    sw, vl = wave_lane(k)
    sm, sn = tile_ids(k, 1, 4)
    g = Gemm(k, 7, 16, NS, SS, **kw)
    smt = gemm_common(k, g, sw, vl, sm, 64)
    ldb = F * 2
    sz2, sz1, sspl, st1 = k.s(), k.s(), k.s(), k.s()
    k(f's_mul_i32 s{sz2}, s{sn}, 3')
    k(f's_lshl_b32 s{sz1}, s{sn}, 2')
    k(f's_sub_u32 s{st1}, s{sz1}, 8')
    k(f's_add_u32 s3, s{sz2}, 8')
    k(f's_cmp_lt_u32 s{sn}, 8')
    k(f's_cselect_b32 s{sz2}, s{sz2}, s{st1}')
    k(f's_cselect_b32 s{sz1}, s{sz1}, s3')
    k(f's_cselect_b32 s{sspl}, 3, 4')
    sb2, sb1 = k.s(), k.s()
    k(f's_add_u32 s{sb2}, s{sz2}, 56')
    k(f's_lshl_b32 s{sb2}, s{sb2}, 6')
    k(f's_sub_u32 s{sb1}, s{sz1}, s{sspl}')
    k(f's_lshl_b32 s{sb1}, s{sb1}, 6')
    k(f's_lshl_b32 s{st1}, s{sspl}, 2')
    t0, t1, t2, vb1, vb2 = k.v(), k.v(), k.v(), k.v(), k.v()
    k(f's_mul_i32 s3, s{sw}, {16 * ldb}')
    k(f'v_mov_b32 v{vb1}, s3')
    k(f'v_add_u32 v{vb2}, s{sb2}, v{vb1}')
    k(f'v_add_u32 v{vb1}, s{sb1}, v{vb1}')
    for p in range(7):
        r = k.v()
        k(f'v_add_u32 v{t0}, {64 * p}, v{vl}')
        k(f'v_mul_u32_u24 v{t1}, 2341, v{t0}')
        k(f'v_lshrrev_b32 v{t1}, 16, v{t1}')
        k(f'v_mul_u32_u24 v{t2}, 28, v{t1}')
        k(f'v_sub_u32 v{t0}, v{t0}, v{t2}')
        k(f'v_cmp_gt_u32 vcc, s{st1}, v{t0}')
        k(f'v_mul_u32_u24 v{t1}, {ldb}, v{t1}')
        k(f'v_lshl_add_u32 v{t1}, v{t0}, 4, v{t1}')
        k(f'v_cndmask_b32 v{t2}, v{vb1}, v{vb2}, vcc')
        k(f'v_add_u32 v{r}, v{t1}, v{t2}')
        if p % 4:
            k(f'v_subrev_u32 v{r}, {(p % 4) * 1024}, v{r}')
        g.v_dma.append(r)
    for c in range(448):
        assert (c * 2341) >> 16 == c // 28
    g.wt_step = 64 * ldb
    k('s_waitcnt lgkmcnt(0)')
    srd_fin(k, qw, D * F * 2)
    g.wt_srd = qw
    g.act_srd = srd_from(k, ws, 4 * MB, HH)
    g.issue_prologue_loads()
    b0 = k.v()
    k(f'v_lshrrev_b32 v{t0}, 5, v{vl}')
    k(f'v_bfe_u32 v{t1}, v{vl}, 2, 2')
    k(f'v_lshl_add_u32 v{t0}, v{t0}, 2, v{t1}')
    k(f'v_mul_u32_u24 v{b0}, 448, v{t0}')
    k(f'v_bfe_u32 v{t0}, v{vl}, 4, 1')
    k(f'v_lshl_add_u32 v{b0}, v{t0}, 5, v{b0}')
    k(f'v_and_b32 v{t0}, 3, v{vl}')
    k(f'v_lshl_add_u32 v{b0}, v{t0}, 3, v{b0}')
    g.rd_base = {0: b0}
    g.rd = lambda ks, nt, t: (0, ks * 7168 + t * 8 * 448 + nt * 64)
    g.prep_read_regs()
    g.zero_acc()
    qst2 = srd_from(k, ws, 256 * 1024, ST2)
    qst3 = srd_from(k, ws, 256 * 1024, ST3)
    qcs = srd_from(k, ws, F * 16, CS4)
    qz1 = srd_from(k, ws, S * FH * 2, Z1)
    qz2 = srd_from(k, ws, S * FH * 2, Z2)
    vtok, vst2, vst3, vcs = k.v(), k.v(), k.v(), k.v()
    k(f'v_and_b32 v{vtok}, 31, v{vl}')
    k(f'v_lshlrev_b32 v{vcs}, 4, v{vtok}')
    k(f's_lshl_b32 s3, s{smt}, 5')
    k(f'v_add_u32 v{vst3}, s3, v{vtok}')
    k(f'v_lshlrev_b32 v{vst3}, 3, v{vst3}')
    k(f'v_lshrrev_b32 v{t0}, 5, v{vl}')
    k(f'v_lshl_add_u32 v{vst2}, v{t0}, 17, v{vst3}')
    k(f's_lshl_b32 s3, s{sn}, 14')
    k(f'v_add_u32 v{vst3}, s3, v{vst3}')
    sslot = [k.s() for _ in range(7)]
    for i in range(7):
        k(f's_mov_b32 s{sslot[i]}, {(i + 1) * 16384}')
    scs = [k.s() for _ in range(7)]
    sz = [k.s() for _ in range(7)]
    for nt in range(7):
        k(f's_add_u32 s{scs[nt]}, s{sz2}, {nt}')
        k(f's_lshr_b32 s3, s{scs[nt]}, 2')
        k('s_lshl_b32 s3, s3, 6')
        k(f's_add_u32 s3, s3, s{smt}')
        k('s_lshl_b32 s3, s3, 2')
        k(f's_and_b32 s{sz[nt]}, s{scs[nt]}, 3')
        k(f's_add_u32 s{sz[nt]}, s{sz[nt]}, s3')
        k(f's_lshl_b32 s{sz[nt]}, s{sz[nt]}, 11')
        k(f's_add_u32 s{scs[nt]}, s{scs[nt]}, 56')
        if nt >= 3:
            k(f's_add_u32 s{st1}, s{sz1}, {nt}')
            k(f's_sub_u32 s{st1}, s{st1}, s{sspl}')
            k(f's_mul_i32 s3, s{smt}, 56')
            k(f's_add_u32 s3, s3, s{st1}')
            k('s_lshl_b32 s3, s3, 11')
            k(f's_cmp_gt_u32 s{sspl}, {nt}')
            k(f's_cselect_b32 s{scs[nt]}, s{scs[nt]}, s{st1}')
            k(f's_cselect_b32 s{sz[nt]}, s{sz[nt]}, s3')
        k(f's_lshl_b32 s{scs[nt]}, s{scs[nt]}, 9')
    vz1, vz2a, vz2b = k.v(), k.v(), k.v()
    k(f'v_lshlrev_b32 v{vz1}, 4, v{vl}')
    k(f'v_lshlrev_b32 v{vz2a}, 5, v{vtok}')
    k(f'v_lshl_add_u32 v{vz2a}, v{t0}, 4, v{vz2a}')
    k(f'v_xor_b32 v{vz2b}, 128, v{vz2a}')
    sone = k.s()
    k(f's_mov_b32 s{sone}, {hex(ONES)}')
    pst = k.v(16, 4)
    pcs = k.v(28, 4)
    u0 = g.nsteps - NS

    def tail(u, gap):
        if u == u0 and gap % 3 == 1 and gap // 3 < 8:
            i = gap // 3
            return [(f'buffer_load_dwordx2 {vr(pst + 2 * i, 2)}, v{vst2}, {sr(qst2, 4)}, ' + (f's{sslot[i - 1]}' if i else '0') + ' offen', 'st')]
        if u == u0 + 1 and gap % 3 == 1 and gap // 3 < 7:
            i = gap // 3
            return [(f'buffer_load_dwordx4 {vr(pcs + 4 * i, 4)}, v{vcs}, {sr(qcs, 4)}, s{scs[i]} offen', 'cs')]
        return []
    g.tail_hook = tail
    g.main()
    for x in g.vm_wait(lambda t: t in ('st', 'cs')):
        k(x)
    for i in (8, 4, 2):
        for j in range(0, i, 2):
            k(f'v_pk_add_f32 {vr(pst + j, 2)}, {vr(pst + j, 2)}, {vr(pst + j + i, 2)}')
    xhalf_add(k, pst, t0)
    xhalf_add(k, pst + 1, t0)
    ln_stats(k, pst, pst + 1, D, t0)
    bm = pst + 2
    k(f'v_xor_b32 v{t0}, 0x80000000, v{pst}')
    k(f'v_cmp_gt_u32 vcc, 32, v{vl}')
    k(f'v_cndmask_b32 v{t0}, 0, v{t0}, vcc')
    k(f'v_lshrrev_b32 v{bm + 1}, 16, v{t0}')
    k(f'v_or_b32 v{bm}, v{bm + 1}, v{t0}')
    c0, c1, sv = pst + 4, pst + 6, pst + 8
    k(f'v_rcp_f32 v{t1}, v{pst + 1}')
    k(f'v_mov_b32 v{sv}, v{pst + 1}')
    k(f'v_mov_b32 v{sv + 1}, v{pst + 1}')
    cc0 = -2.0 * LOG2E * (2.0 / 3.141592653589793) ** 0.5
    k(f'v_mul_f32 v{c0}, {hexf(cc0)}, v{t1}')
    k(f'v_mul_f32 v{t1}, v{t1}, v{t1}')
    k(f'v_mul_f32 v{t1}, {hexf(0.044715)}, v{t1}')
    k(f'v_mov_b32 v{c0 + 1}, v{c0}')
    k(f'v_mul_f32 v{c1}, v{c0}, v{t1}')
    k(f'v_mov_b32 v{c1 + 1}, v{c1}')
    for nt in range(7):
        p = pcs + 4 * nt
        k(f'v_pk_add_f32 {vr(p, 2)}, {vr(p, 2)}, {vr(p + 2, 2)}')
        k(f'v_add_f32 v{p}, v{p}, v{p + 1}')
        k(f'v_and_b32 v{p + 1}, 0xffff0000, v{p}')
        k(f'v_sub_f32 v{p + 2}, v{p}, v{p + 1}')
        k(f'v_and_b32 v{p + 3}, 0xffff0000, v{p + 2}')
        k(f'v_sub_f32 v{p + 2}, v{p + 2}, v{p + 3}')
        k(f'v_lshrrev_b32 v{p}, 16, v{p + 1}')
        k(f'v_or_b32 v{p}, v{p}, v{p + 3}')
        k(f'v_lshrrev_b32 v{p + 1}, 16, v{p + 2}')
        a = vr(g.acc + 16 * nt, 16)
        k(f'v_mfma_f32_32x32x8bf16_1k {a}, {vr(p, 2)}, {vr(bm, 2)}, {a}')
    tmp = pst + 10 - 2
    tmp = k.v(8, 4)
    o = k.v(16, 4)
    st = pst + 10
    k(f'v_mov_b32 v{st}, 0')
    k(f'v_mov_b32 v{st + 1}, 0')

    def store_z2(nt, d):
        k(f'buffer_store_dwordx4 {vr(d, 4)}, v{vz2a}, {sr(qz2, 4)}, s{sz[nt]} offen')
        k(f'buffer_store_dwordx4 {vr(d + 4, 4)}, v{vz2b}, {sr(qz2, 4)}, s{sz[nt]} offen offset:1024')
        for i in range(8):
            k(f'v_dot2_f32_bf16 v{st}, v{d + i}, s{sone}, v{st}')
            k(f'v_dot2_f32_bf16 v{st + 1}, v{d + i}, v{d + i}, v{st + 1}')

    def store_z1(nt, d):
        k(f'buffer_store_dwordx4 {vr(d, 4)}, v{vz1}, {sr(qz1, 4)}, s{sz[nt]} offen')
        k(f'buffer_store_dwordx4 {vr(d + 4, 4)}, v{vz1}, {sr(qz1, 4)}, s{sz[nt]} offen offset:1024')

    for nt in range(7):
        a = g.acc + 16 * nt
        d = o + 8 * (nt & 1)
        gelu16(k, a, c0, c1, sv, tmp)
        pack(k, d, a, 8)
        if nt < 3:
            store_z2(nt, d)
        elif nt == 3:
            la, lb = k.label('x1'), k.label('xe')
            k(f's_cmp_eq_u32 s{sspl}, 3')
            k(f's_cbranch_scc1 {la}')
            store_z2(nt, d)
            k(f's_branch {lb}')
            k(f'{la}:')
            store_z1(nt, d)
            k(f'{lb}:')
            xhalf_add(k, st, t0)
            xhalf_add(k, st + 1, t0)
            k('s_mov_b32 exec_hi, 0')
            k(f'buffer_store_dwordx2 {vr(st, 2)}, v{vst3}, {sr(qst3, 4)}, 0 offen')
            k('s_mov_b64 exec, -1')
        else:
            store_z1(nt, d)
    finish(k)
    return k


def k5b_ln3():
    k = Kernel('k5b_ln3_kernel', 224, 256, 0)
    start(k, 224)
    ws = k.s(2)
    k(f's_load_dwordx2 {sr(ws, 2)}, s[0:1], {A_WS}')
    sw, vl = wave_lane(k)
    sr_ = k.s()
    k(f's_lshl_b32 s{sr_}, s2, 2')
    k(f's_add_u32 s{sr_}, s{sr_}, s{sw}')
    va, vb, vs, t = k.v(), k.v(), k.v(), k.v()
    k(f's_lshl_b32 s3, s{sr_}, 13')
    k(f'v_lshl_add_u32 v{va}, v{vl}, 4, s3')
    k(f'v_xor_b32 v{vb}, 128, v{va}')
    k(f's_and_b32 s3, s{sr_}, 63')
    k('s_lshl_b32 s3, s3, 5')
    k(f'v_lshrrev_b32 v{vs}, 1, v{vl}')
    k(f'v_add_u32 v{vs}, s3, v{vs}')
    k(f'v_lshlrev_b32 v{vs}, 3, v{vs}')
    k(f'v_and_b32 v{t}, 1, v{vl}')
    k(f'v_lshl_add_u32 v{vs}, v{t}, 17, v{vs}')
    k('s_waitcnt lgkmcnt(0)')
    qst = srd_from(k, ws, 256 * 1024, ST3)
    qz = srd_from(k, ws, S * FH * 2, Z2)
    p = k.v(16, 4)
    x = k.v(32, 4)
    so = k.s()
    for i in range(8):
        k(f's_mov_b32 s{so}, {i * 16384}')
        k(f'buffer_load_dwordx2 {vr(p + 2 * i, 2)}, v{vs}, {sr(qst, 4)}, s{so} offen')
    k(f's_mov_b32 s{so}, 4096')
    for i in range(8):
        k(f'buffer_load_dwordx4 {vr(x + 4 * i, 4)}, v{vb if i & 1 else va}, {sr(qz, 4)}, ' + (f's{so}' if i >= 4 else '0') + f' offen offset:{(i % 4) * 1024}')
    k('s_waitcnt vmcnt(8)')
    for i in (8, 4, 2):
        for j in range(0, i, 2):
            k(f'v_pk_add_f32 {vr(p + j, 2)}, {vr(p + j, 2)}, {vr(p + j + i, 2)}')
    for i in range(2):
        k(f'v_add_f32_dpp v{p + i}, v{p + i}, v{p + i} quad_perm:[1,0,3,2] row_mask:0xf bank_mask:0xf')
    ln_stats(k, p, p + 1, FH, t)
    k(f'v_rcp_f32 v{p + 2}, v{p + 1}')
    k(f'v_mov_b32 v{p + 1}, v{p}')
    k(f'v_mov_b32 v{p + 3}, v{p + 2}')
    f = k.v(8, 4)
    for i in range(8):
        k(f's_waitcnt vmcnt(7)')
        r = x + 4 * i
        for d in range(4):
            k(f'v_lshlrev_b32 v{f + 2 * d}, 16, v{r + d}')
            k(f'v_and_b32 v{f + 2 * d + 1}, 0xffff0000, v{r + d}')
        for d in range(4):
            k(f'v_pk_add_f32 {vr(f + 2 * d, 2)}, {vr(f + 2 * d, 2)}, {vr(p, 2)} neg_lo:[0,1] neg_hi:[0,1]')
        pack(k, r, f, 4)
        for d in range(4):
            k(f'v_lshlrev_b32 v{f + 2 * d}, 16, v{r + d}')
            k(f'v_and_b32 v{f + 2 * d + 1}, 0xffff0000, v{r + d}')
        for d in range(4):
            k(f'v_pk_mul_f32 {vr(f + 2 * d, 2)}, {vr(f + 2 * d, 2)}, {vr(p + 2, 2)}')
        pack(k, r, f, 4)
        k(f'buffer_store_dwordx4 {vr(r, 4)}, v{vb if i & 1 else va}, {sr(qz, 4)}, ' + (f's{so}' if i >= 4 else '0') + f' offen offset:{(i % 4) * 1024}')
    finish(k)
    return k


def k6_sp(NS=4, **kw):
    SS = 16384
    k = Kernel('k6_sp_kernel', 224, 256, NS * SS)
    start(k, 224)
    qb = load_ptr(k, A_BSP)
    ws = k.s(2)
    k(f's_load_dwordx2 {sr(ws, 2)}, s[0:1], {A_WS}')
    sw, vl = wave_lane(k)
    sm, sn = tile_ids(k, 2, 7)
    g = Gemm(k, 4, 32, NS, SS, **kw)
    smt = gemm_common(k, g, sw, vl, sm, 128)
    vd = k.v()
    k(f's_lshl_b32 s3, s{sn}, 7')
    k(f's_add_u32 s3, s3, s{sw}')
    k('s_lshl_b32 s3, s3, 12')
    k(f'v_lshl_add_u32 v{vd}, v{vl}, 4, s3')
    g.v_dma = [vd]
    g.wt_step = 16384
    k('s_waitcnt lgkmcnt(0)')
    g.wt_srd = srd_from(k, ws, S * FH * 2, Z2)
    g.act_srd = srd_from(k, ws, 8 * MB, WSP)
    g.issue_prologue_loads()
    b0, b1, t = k.v(), k.v(), k.v()
    k(f'v_bfe_u32 v{t}, v{vl}, 4, 1')
    k(f'v_mul_u32_u24 v{b0}, {1024 + 128}, v{t}')
    k(f'v_lshrrev_b32 v{t}, 5, v{vl}')
    k(f'v_lshl_add_u32 v{b0}, v{t}, 8, v{b0}')
    k(f'v_bfe_u32 v{t}, v{vl}, 2, 2')
    k(f'v_lshl_add_u32 v{b0}, v{t}, 5, v{b0}')
    k(f'v_and_b32 v{t}, 1, v{vl}')
    k(f'v_lshl_add_u32 v{b0}, v{t}, 4, v{b0}')
    k(f'v_bfe_u32 v{t}, v{vl}, 1, 1')
    k(f'v_lshl_add_u32 v{b0}, v{t}, 3, v{b0}')
    k(f'v_xor_b32 v{b1}, 128, v{b0}')
    g.rd_base = {0: b0, 1: b1}
    g.rd = lambda ks, nt, t: (t, (ks >> 1) * 8192 + nt * 2048 + (ks & 1) * 512)
    g.prep_read_regs()
    g.zero_acc()
    srd_fin(k, qb, S * 2)
    qz1 = srd_from(k, ws, S * FH * 2, Z1)
    qy = srd_from(k, ws, S * FH * 2, YY)
    vz, vb = k.v(), k.v()
    k(f's_mul_i32 s3, s{smt}, 14')
    k(f's_add_u32 s3, s3, s{sn}')
    k('s_lshl_b32 s3, s3, 13')
    k(f'v_lshl_add_u32 v{vz}, v{vl}, 4, s3')
    k(f'v_and_b32 v{vb}, 31, v{vl}')
    k(f's_lshl_b32 s3, s{smt}, 5')
    k(f'v_add_u32 v{vb}, s3, v{vb}')
    k(f'v_lshlrev_b32 v{vb}, 1, v{vb}')
    s4k = k.s()
    k(f's_mov_b32 s{s4k}, 4096')
    z = k.v(32, 4)
    bb = k.v(2, 2)
    u0 = g.nsteps - NS

    def tail(u, gap):
        if u == u0 and gap % 2 == 1:
            i = gap // 2
            return [(f'buffer_load_dwordx4 {vr(z + 4 * i, 4)}, v{vz}, {sr(qz1, 4)}, ' + (f's{s4k}' if i >= 4 else '0') + f' offen offset:{(i % 4) * 1024}', 'z')]
        if u == u0 + 1 and gap == 1:
            return [(f'buffer_load_ushort v{bb}, v{vb}, {sr(qb, 4)}, 0 offen', 'z')]
        return []
    g.tail_hook = tail
    g.main()
    for x in g.vm_wait(lambda t: t == 'z'):
        k(x)
    k(f'v_lshlrev_b32 v{bb}, 16, v{bb}')
    k(f'v_mov_b32 v{bb + 1}, v{bb}')
    f = k.v(8, 4)
    for i in range(8):
        a = g.acc + 8 * i
        r = z + 4 * i
        for d in range(4):
            k(f'v_lshlrev_b32 v{f + 2 * d}, 16, v{r + d}')
            k(f'v_and_b32 v{f + 2 * d + 1}, 0xffff0000, v{r + d}')
        for d in range(4):
            k(f'v_pk_add_f32 {vr(a + 2 * d, 2)}, {vr(a + 2 * d, 2)}, {vr(bb, 2)}')
        for d in range(4):
            k(f'v_pk_mul_f32 {vr(a + 2 * d, 2)}, {vr(a + 2 * d, 2)}, {vr(f + 2 * d, 2)}')
        pack(k, r, a, 4)
        k(f'buffer_store_dwordx4 {vr(r, 4)}, v{vz}, {sr(qy, 4)}, ' + (f's{s4k}' if i >= 4 else '0') + f' offen offset:{(i % 4) * 1024}')
    finish(k)
    return k
```

```python
import sys
from attn import *
from gen import v1
def empty():
    k = Kernel('e_kernel', 1, 64, 0)
    k('s_endpgm')
    return k
ks = v1()
e = empty()
open('x_e8.s', 'w').write(build_file(ks + [e], ks + [e] * 8, verbose=0))
ks = v1()
e = empty()
open('x_e16.s', 'w').write(build_file(ks + [e], ks + [e] * 16, verbose=0))
ks = v1()
open('x_dbl.s', 'w').write(build_file(ks, ks + ks, verbose=0))
ks = v1()
open('x_a2.s', 'w').write(build_file(ks, ks[:3] + ks[2:], verbose=0))
```

```python
from asmlib import *

S, D, H, F, FH = 2048, 1024, 32, 3584, 1792
MB = 1 << 20
XN, QO, KV, OO, HH, Z1, Z2, YY, WSP = 0, 4 * MB, 8 * MB, 16 * MB, 20 * MB, 24 * MB, 32 * MB, 40 * MB, 48 * MB
ST2 = 56 * MB
ST3 = 56 * MB + 256 * 1024
CS4 = 56 * MB + 512 * 1024
TJ = 57 * MB
A_X, A_WQKV, A_WO, A_WIN, A_WSP, A_BSP, A_WOUT, A_OUT, A_DBG, A_WS = 0, 8, 16, 32, 40, 48, 56, 64, 72, 80
ONES = 0x3f803f80
LOG2E = 1.4426950408889634


def start(k, ngrid):
    k.ns = 4
    k.nv = 1
    k.end = f'.L{k.name}_end'
    k(f's_cmp_ge_u32 s2, {ngrid}')
    k(f's_cbranch_scc1 {k.end}')
    if PROF['on']:
        k.pidx = PROF['n']
        PROF['n'] += 1
        k.ps = 84
        k(f's_memrealtime s[84:85]')
        k(f's_memtime s[86:87]')
        k(f's_load_dwordx2 s[96:97], s[0:1], {A_WS}')
        k(f'v_lshrrev_b32 v1, 6, v0')
        k(f'v_readfirstlane_b32 s100, v1')
        k(f's_lshl_b32 s101, s2, 3')
        k(f's_add_u32 s100, s100, s101')
        k(f's_lshl_b32 s100, s100, 5')
        k(f's_getreg_b32 s101, hwreg(HW_REG_XCC_ID)')
        k('s_waitcnt lgkmcnt(0)')


PROF = {'on': False, 'n': 0}


def mark(k, i):
    if PROF['on']:
        k(f's_memtime s[{92 + 2 * i}:{93 + 2 * i}]')


def prof_end(k):
    if PROF['on']:
        k('s_waitcnt vmcnt(0) lgkmcnt(0)')
        k(f's_memrealtime s[88:89]')
        k(f's_memtime s[90:91]')
        k(f's_add_u32 s96, s96, {TJ + k.pidx * 65536}')
        k(f's_addc_u32 s97, s97, 0')
        k(f's_mov_b32 s98, 65536')
        k(f's_mov_b32 s99, 0x00020000')
        k('s_mov_b64 exec, 1')
        k('s_waitcnt lgkmcnt(0)')
        for i, r in enumerate((84, 86, 88, 90, 92, 94, 101, 101)):
            k(f'v_mov_b32 v{i}, s{r}')
        k(f'buffer_store_dwordx4 v[0:3], off, s[96:99], s100')
        k(f'buffer_store_dwordx4 v[4:7], off, s[96:99], s100 offset:16')


def finish(k):
    prof_end(k)
    k(f'{k.end}:')
    k('s_endpgm')


def load_ptr(k, off):
    q = k.s(4)
    k(f's_load_dwordx2 {sr(q, 2)}, s[0:1], {off}')
    return q


def srd_fin(k, q, size, add=0):
    if add:
        k(f's_add_u32 s{q}, s{q}, {add}')
        k(f's_addc_u32 s{q + 1}, s{q + 1}, 0')
    k(f's_mov_b32 s{q + 2}, {size}')
    k(f's_mov_b32 s{q + 3}, 0x00020000')


def srd_from(k, base, size, add=0):
    q = k.s(4)
    k(f's_add_u32 s{q}, s{base}, {add}')
    k(f's_addc_u32 s{q + 1}, s{base + 1}, 0')
    k(f's_mov_b32 s{q + 2}, {size}')
    k(f's_mov_b32 s{q + 3}, 0x00020000')
    return q


def wave_lane(k):
    sw = k.s()
    vl = k.v()
    k(f'v_lshrrev_b32 v{vl}, 6, v0')
    k(f'v_readfirstlane_b32 s{sw}, v{vl}')
    k(f'v_and_b32 v{vl}, 63, v0')
    return sw, vl


def xhalf_add(k, v, t):
    k(f'v_mov_b32 v{t}, v{v}')
    k(f'v_permlane32_swap_b32 v{v}, v{t}')
    k(f'v_add_f32 v{v}, v{v}, v{t}')


def x16_add(k, v, t):
    k(f'v_mov_b32 v{t}, v{v}')
    k(f'v_permlane16_swap_b32 v{v}, v{t}')
    k(f'v_add_f32 v{v}, v{v}, v{t}')


def rnd_bf16(k, v):
    k(f'v_cvt_pk_bf16_f32 v{v}, v{v}, v{v}')
    k(f'v_and_b32 v{v}, 0xffff0000, v{v}')


def ln_stats(k, vs, vq, n, t):
    k(f'v_mul_f32 v{vs}, {hexf(1.0 / n)}, v{vs}')
    k(f'v_mul_f32 v{vq}, {hexf(1.0 / n)}, v{vq}')
    k(f'v_fma_f32 v{vq}, -v{vs}, v{vs}, v{vq}')
    k(f'v_max_f32 v{vq}, 0, v{vq}')
    rnd_bf16(k, vs)
    rnd_bf16(k, vq)
    k(f'v_add_f32 v{vq}, {hexf(1e-5)}, v{vq}')
    rnd_bf16(k, vq)
    k(f'v_sqrt_f32 v{vq}, v{vq}')
    rnd_bf16(k, vq)
```

```python
import sys
from attn import *
from gen import v1
def empty():
    k = Kernel('e_kernel', 1, 64, 0)
    k('s_endpgm')
    return k
ks = v1()
e = empty()
open('x_p8.s', 'w').write(build_file(ks + [e], [e] * 8 + ks, verbose=0))
ks = v1()
e = empty()
open('x_p1.s', 'w').write(build_file(ks + [e], [e] * 1 + ks, verbose=0))
ks = v1()
open('x_k1x2.s', 'w').write(build_file(ks, ks[:1] + ks, verbose=0))
ks = v1()
open('x_k12x2.s', 'w').write(build_file(ks, ks[:2] + ks, verbose=0))
k = Kernel('flush_kernel', 1024, 64, 0)
k('.rept 40000\nv_mov_b32 v1, 0x12345678\n.endr'.replace('\n', '\n'))
k('s_endpgm')
txt = build_file([k], verbose=0)
open('flush.s', 'w').write(txt)
```

```python
import re

HEADER = """; Kernarg layout for this problem (88 bytes, ptrs only, base s[0:1]):
;   offset  80: d_ws      268435456 bytes workspace (unspecified values whenever your kernel or launch list starts; a list's later launches find what earlier ones wrote)
"""

TRANS = ('v_exp_f32', 'v_log_f32', 'v_rcp_f32', 'v_rsq_f32', 'v_sqrt_f32', 'v_sin_f32', 'v_cos_f32',
         'v_rcp_iflag_f32', 'v_exp_f16', 'v_log_f16', 'v_rcp_f16', 'v_rsq_f16', 'v_sqrt_f16')

_reg_re = re.compile(r'^([vas])(\d+)$')
_rng_re = re.compile(r'^([vas])\[(\d+):(\d+)\]$')


def parse_regs(tok):
    t = tok.strip()
    t = t.lstrip('-')
    if t.startswith('abs(') and t.endswith(')'):
        t = t[4:-1]
    if t.startswith('|') and t.endswith('|'):
        t = t[1:-1]
    if t.startswith('neg(') and t.endswith(')'):
        t = t[4:-1]
    m = _reg_re.match(t)
    if m:
        return {(m.group(1), int(m.group(2)))}
    m = _rng_re.match(t)
    if m:
        return {(m.group(1), i) for i in range(int(m.group(2)), int(m.group(3)) + 1)}
    if t in ('vcc', 'vcc_lo', 'vcc_hi'):
        return {('vcc', 0)}
    if t in ('exec', 'exec_lo', 'exec_hi'):
        return {('exec', 0)}
    if t == 'm0':
        return {('m0', 0)}
    return set()


def split_ops(s):
    out, depth, cur = [], 0, ''
    for ch in s:
        if ch in '[(':
            depth += 1
        if ch in '])':
            depth -= 1
        if ch == ',' and depth == 0:
            out.append(cur.strip())
            cur = ''
        else:
            cur += ch
    if cur.strip():
        out.append(cur.strip())
    return out


class Ins:
    __slots__ = ('text', 'op', 'dst', 'src', 'srcC', 'srcAB', 'kind', 'passes', 'target', 'states', 'mods',
                 'store_data', 'is_dpp', 'is_lds_dma', 'opsel')

    def __init__(self, text):
        self.text = text
        body = text.split(';')[0].strip()
        parts = body.split(None, 1)
        op = parts[0]
        rest = parts[1] if len(parts) > 1 else ''
        for suf in ('_e32', '_e64', '_sdwa', '_dpp'):
            if op.endswith(suf) and op.startswith('v_'):
                base = op[:-len(suf)]
                break
        else:
            base = op
        self.op = base
        ops = split_ops(rest)
        mods = ''
        if ops:
            last = ops[-1].split(None, 1)
            if len(last) > 1 and not op.startswith('s_waitcnt'):
                ops[-1] = last[0]
                mods = last[1]
        self.mods = mods
        self.dst, self.src, self.srcC, self.srcAB = set(), set(), set(), set()
        self.store_data = set()
        self.passes = 0
        self.target = None
        self.states = 1
        self.is_dpp = op.endswith('_dpp') or any(k in mods for k in ('row_', 'quad_perm', 'wave_', 'row_bcast'))
        self.opsel = op.endswith('_sdwa') or ('op_sel:' in mods and not base.startswith('v_pk_'))
        self.is_lds_dma = False
        R = [parse_regs(o) for o in ops]
        allr = lambda lst: set().union(*lst) if lst else set()
        if base.startswith('v_mfma') or base.startswith('v_smfmac'):
            self.kind = 'mfma'
            self.dst = R[0]
            self.srcAB = R[1] | R[2]
            self.srcC = R[3]
            if base.startswith('v_smfmac'):
                self.srcAB |= R[3]
                self.srcC = R[0]
            self.src = self.srcAB | self.srcC
            if '32x32x16' in base or '32x32x8' in base or '32x32x32' in base:
                self.passes = 8
            elif '16x16x32' in base or '16x16x16' in base or '16x16x64' in base:
                self.passes = 4
            elif '4x4x4' in base:
                self.passes = 2
            else:
                raise ValueError('unknown mfma ' + base)
        elif base.startswith('v_'):
            self.kind = 'trans' if base in TRANS else 'valu'
            if base.startswith('v_cmp'):
                self.dst = set(R[0])
                if base.startswith('v_cmpx'):
                    self.dst |= {('exec', 0)}
                self.src = allr(R[1:])
            elif base in ('v_add_co_u32', 'v_sub_co_u32', 'v_addc_co_u32', 'v_subb_co_u32', 'v_div_scale_f32',
                          'v_mad_u64_u32', 'v_subrev_co_u32'):
                self.dst = R[0] | R[1]
                self.src = allr(R[2:])
            elif base.startswith('v_permlane') and 'swap' in base or base == 'v_swap_b32':
                self.dst = R[0] | R[1]
                self.src = R[0] | R[1]
            elif base == 'v_nop':
                pass
            else:
                self.dst = R[0]
                self.src = allr(R[1:])
                if base.startswith('v_fmac') or base.startswith('v_dot2c') or base.startswith('v_pk_fmac') \
                        or base == 'v_writelane_b32' or self.is_dpp or op.endswith('_sdwa'):
                    self.src |= R[0]
                if base.startswith('v_dot'):
                    self.srcAB = R[1] | R[2]
                if base == 'v_cndmask_b32' and len(R) == 3:
                    self.src |= {('vcc', 0)}
                if base == 'v_div_fmas_f32':
                    self.src |= {('vcc', 0)}
        elif base.startswith('buffer_') or base.startswith('global_') or base.startswith('flat_'):
            self.kind = 'vmem'
            toks = mods.split()
            if base.startswith('buffer_wbl2') or base.startswith('buffer_inv'):
                pass
            elif 'lds' in toks or base.startswith('global_load_lds'):
                self.is_lds_dma = True
                self.src = allr(R) | {('m0', 0)}
            elif base.startswith('buffer_load') or base.startswith('global_load'):
                self.dst = R[0]
                self.src = allr(R[1:])
            elif base.startswith('buffer_store'):
                self.src = allr(R)
                if base.endswith('x3') or base.endswith('x4'):
                    self.store_data = R[0]
            elif base.startswith('global_store'):
                self.src = allr(R)
                if base.endswith('x3') or base.endswith('x4'):
                    self.store_data = R[1]
            elif 'atomic' in base:
                self.src = allr(R)
                if 'sc0' in toks:
                    self.dst = R[0]
            else:
                raise ValueError('unknown vmem ' + text)
        elif base.startswith('ds_'):
            self.kind = 'ds'
            if base.startswith('ds_read') or base.startswith('ds_bpermute') or base.startswith('ds_permute') \
                    or base.startswith('ds_swizzle') or '_rtn' in base:
                self.dst = R[0]
                self.src = allr(R[1:])
            else:
                self.src = allr(R)
        elif base.startswith('s_'):
            self.kind = 'salu'
            if base == 's_nop':
                self.states = int(ops[0], 0) + 1
            elif base in ('s_branch',) or base.startswith('s_cbranch'):
                self.kind = 'branch'
                self.target = ops[0]
            elif base in ('s_waitcnt', 's_barrier', 's_endpgm', 's_setprio', 's_sleep', 's_setreg_b32',
                          's_setreg_imm32_b32'):
                pass
            elif base.startswith('s_cmp') or base.startswith('s_bitcmp'):
                self.src = allr(R)
            else:
                self.dst = set(R[0]) if R else set()
                self.src = allr(R[1:])
                if 'saveexec' in base:
                    self.dst |= {('exec', 0)}
                    self.src |= {('exec', 0)}
        else:
            raise ValueError('unknown instruction: ' + text)


def isvalu(i):
    return i.kind in ('valu', 'trans')


def vregs(s):
    return {r for r in s if r[0] in ('v', 'a')}


def sregs(s):
    return {r for r in s if r[0] in ('s', 'vcc')}


def required(p, c):
    need = 0
    if isvalu(p):
        wv = vregs(p.dst)
        ws = sregs(p.dst)
        if wv:
            if p.op.startswith('v_dot'):
                if c.op == p.op:
                    if wv & c.srcAB:
                        need = max(need, 3)
                elif wv & (c.src | c.dst):
                    need = max(need, 3)
            if c.kind == 'mfma' and wv & c.src:
                need = max(need, 2)
            if isvalu(c):
                if c.op.startswith('v_permlane') and wv & c.src:
                    need = max(need, 2)
                if c.is_dpp and wv & c.src:
                    need = max(need, 2)
                if c.op in ('v_readlane_b32', 'v_readfirstlane_b32') and wv & c.src:
                    need = max(need, 1)
                if p.kind == 'trans' and c.kind != 'trans' and wv & c.src:
                    need = max(need, 1)
                if p.opsel and wv & (c.src | c.dst):
                    need = max(need, 1)
            if p.kind == 'trans' and c.kind in ('vmem', 'ds') and wv & c.src:
                need = max(need, 1)
        if ws:
            if isvalu(c) and ws & c.src:
                need = max(need, 4 if c.op in ('v_readlane_b32', 'v_writelane_b32', 'v_div_fmas_f32') else 2)
            if c.kind == 'mfma' and ws & c.src:
                need = max(need, 2)
            if c.kind == 'vmem' and ws & c.src:
                need = max(need, 5)
            if c.kind in ('salu', 'branch') and (ws & c.src or (c.kind == 'branch' and 'vcc' in c.op and ('vcc', 0) in ws)):
                need = max(need, 1)
        if ('exec', 0) in p.dst:
            if c.kind == 'mfma' or c.op.startswith('v_permlane') or c.op in (
                    'v_readlane_b32', 'v_readfirstlane_b32', 'v_writelane_b32'):
                need = max(need, 4)
            if c.is_dpp:
                need = max(need, 5)
            if isvalu(c) and ('exec', 0) in c.src:
                need = max(need, 2)
    elif p.kind == 'mfma':
        idx = {2: 0, 4: 1, 8: 2, 16: 3}[p.passes]
        if c.kind == 'mfma':
            if p.dst & c.srcC:
                if p.dst == c.srcC and p.passes == c.passes:
                    need = max(need, (2, 0, 0, 0)[idx])
                else:
                    need = max(need, (4, 6, 10, 18)[idx])
            if p.dst & c.srcAB:
                need = max(need, (5, 8, 12, 20)[idx])
            if p.dst & c.dst and not (p.dst == c.srcC and p.passes == c.passes):
                need = max(need, (4, 6, 10, 18)[idx] if p.passes > c.passes else 0)
        elif isvalu(c):
            if p.op.startswith('v_smfmac'):
                idx += 1
            if p.dst & (c.src | c.dst):
                need = max(need, (5, 8, 12, 20)[idx])
            if p.srcC & c.dst:
                need = max(need, (1, 3, 7, 15)[idx])
        elif c.kind in ('vmem', 'ds'):
            if p.op.startswith('v_smfmac'):
                idx += 1
            if p.dst & (c.src | c.dst):
                need = max(need, (5, 8, 12, 20)[idx])
            if p.srcC & c.dst:
                need = max(need, (1, 3, 7, 15)[idx])
    elif p.kind == 'salu':
        if ('m0', 0) in p.dst and (c.is_lds_dma or 'addtid' in c.op):
            need = max(need, 1)
    elif p.kind == 'vmem':
        if p.store_data:
            if isvalu(c) and p.store_data & c.dst:
                need = max(need, 2)
            elif p.store_data & c.dst:
                need = max(need, 1)
    return need


MAXW = 21


def pad_hazards(lines, name='', verbose=True):
    items = []
    for ln in lines:
        s = ln.split(';')[0].strip()
        if not s:
            continue
        if s.endswith(':') or s.startswith('.'):
            items.append(s)
        else:
            items.append(Ins(ln.strip()))
    inserted = []
    for it in range(6):
        labels = {}
        for i, x in enumerate(items):
            if isinstance(x, str) and x.endswith(':'):
                labels[x[:-1]] = i
        branches_to = {}
        for i, x in enumerate(items):
            if isinstance(x, Ins) and x.kind == 'branch':
                branches_to.setdefault(labels[x.target], []).append(i)
        out = []
        changed = False
        extra = [0] * len(items)
        for i, c in enumerate(items):
            if not isinstance(c, Ins):
                continue
            if c.kind == 'salu' and not c.src:
                continue
            need = 0
            why = None
            stack = [(i - 1, extra[i], True)]
            seen = set()
            while stack:
                j, dist, fall = stack.pop()
                while j >= 0 and dist < MAXW:
                    x = items[j]
                    if isinstance(x, str):
                        if x.endswith(':'):
                            for b in branches_to.get(j, ()):
                                if (b, dist) not in seen:
                                    seen.add((b, dist))
                                    stack.append((b, dist, False))
                        j -= 1
                        fall = True
                        continue
                    if fall and x.op in ('s_branch', 's_endpgm'):
                        break
                    fall = True
                    r = required(x, c)
                    if r - dist > need:
                        need = r - dist
                        why = x
                    dist += x.states + extra[j]
                    j -= 1
            if need > 0:
                extra[i] += need
                changed = True
                inserted.append((need, why.text, c.text))
        for i, x in enumerate(items):
            n = extra[i]
            while n > 0:
                k = min(n, 16)
                out.append(Ins(f's_nop {k - 1}'))
                n -= k
            out.append(x)
        items = out
        if not changed:
            break
    if verbose and inserted:
        print(f'[{name}] hazard pads inserted: {len(inserted)}')
        if verbose > 1:
            for n, a, b in inserted:
                print(f'   {n}: {a}  ->  {b}')
    res = []
    for x in items:
        if isinstance(x, str):
            res.append(x)
        else:
            res.append(' ' + x.text.replace(', ', ',').replace(' offset:0', ''))
    return res, items


class Kernel:
    def __init__(self, name, grid, block=256, lds=0):
        self.name = name
        self.grid = grid
        self.block = block
        self.lds = lds
        self.lines = []
        self.nv = 0
        self.na = 0
        self.ns = 0
        self._lab = 0
        self.force_vgpr = None

    def __call__(self, text):
        for ln in text.split('\n'):
            if ln.strip():
                self.lines.append(ln.strip())

    def v(self, n=1, align=None):
        al = align or (2 if n > 1 else 1)
        self.nv = (self.nv + al - 1) // al * al
        r = self.nv
        self.nv += n
        assert self.nv <= 256, 'out of VGPRs'
        return r

    def a(self, n=1, align=None):
        al = align or (2 if n > 1 else 1)
        self.na = (self.na + al - 1) // al * al
        r = self.na
        self.na += n
        assert self.na <= 256, 'out of AGPRs'
        return r

    def s(self, n=1, align=None):
        al = align or (4 if n >= 4 else (2 if n > 1 else 1))
        self.ns = (self.ns + al - 1) // al * al
        r = self.ns
        self.ns += n
        assert self.ns <= 102, 'out of SGPRs'
        return r

    def label(self, base='L'):
        self._lab += 1
        return f'.L{self.name[:3]}_{base}_{self._lab}'

    def finish(self, verbose=1):
        body, items = pad_hazards(self.lines, self.name, verbose)
        mv = ma = ms = -1
        for x in items:
            if isinstance(x, Ins):
                for k, n in x.dst | x.src:
                    if k == 'v':
                        mv = max(mv, n)
                    elif k == 'a':
                        ma = max(ma, n)
                    elif k == 's':
                        ms = max(ms, n)
        nv = max(mv + 1, 4)
        acc = (nv + 3) // 4 * 4
        tot = acc + ma + 1 if ma >= 0 else nv
        if self.force_vgpr:
            tot = max(tot, self.force_vgpr)
        nins = sum(1 for x in items if isinstance(x, Ins))
        if verbose:
            print(f'[{self.name}] vgpr={nv} agpr={ma + 1} total={tot} sgpr={ms + 1} lds={self.lds} ins={nins}')
        text = [f'.globl {self.name}', '.p2align 8', f'.type {self.name},@function', f'{self.name}:'] + body
        desc = ['.p2align 6', f'.amdhsa_kernel {self.name}',
                f'  .amdhsa_next_free_vgpr {tot}',
                f'  .amdhsa_next_free_sgpr {max(ms + 1, 16)}',
                f'  .amdhsa_accum_offset {acc}',
                '  .amdhsa_group_segment_fixed_size 0',
                '  .amdhsa_kernarg_size 88',
                '  .amdhsa_user_sgpr_count 2',
                '  .amdhsa_user_sgpr_kernarg_segment_ptr 1',
                '  .amdhsa_system_sgpr_workgroup_id_x 1',
                '  .amdhsa_float_denorm_mode_32 3',
                '  .amdhsa_ieee_mode 0',
                '  .amdhsa_dx10_clamp 1',
                '.end_amdhsa_kernel']
        return text, desc


def build_file(kernels, launches=None, verbose=1):
    launches = launches or kernels
    out = [HEADER.rstrip('\n')]
    for k in launches:
        out.append(f'; @launch kernel={k.name} grid=({k.grid},1,1) block=({k.block},1,1) lds={k.lds}')
    out.append('.amdgcn_target "amdgcn-amd-amdhsa--gfx950"')
    out.append('.text')
    descs = []
    for k in kernels:
        t, d = k.finish(verbose)
        out += t
        descs += d
    out.append('.section .rodata,"a"')
    out += descs
    return '\n'.join(out) + '\n'


def vr(b, n=1):
    return f'v{b}' if n == 1 else f'v[{b}:{b + n - 1}]'


def ar(b, n=1):
    return f'a{b}' if n == 1 else f'a[{b}:{b + n - 1}]'


def sr(b, n=1):
    return f's{b}' if n == 1 else f's[{b}:{b + n - 1}]'


def f2u(x):
    import struct
    return struct.unpack('<I', struct.pack('<f', x))[0]


def hexf(x):
    return hex(f2u(x))
```

```python
S_, D, H, F, FH = 2048, 1024, 32, 3584, 1792
MB = 1 << 20
KB = 1024
CNT = 0
ST1 = 1024 * KB
CS1 = 192 * KB
CSQ = 256 * KB
ST2 = 512 * KB
ST3 = 768 * KB
KV = 8 * MB
OO = 16 * MB
HH = 20 * MB
WIN = 24 * MB
WSP = 32 * MB
Z2 = 40 * MB
YY = 48 * MB
TJ = 57 * MB
WUP = 60 * MB
A_X, A_WQKV, A_WO, A_WIN, A_WSP, A_BSP, A_WOUT, A_OUT, A_DBG, A_WS = 0, 8, 16, 32, 40, 48, 56, 64, 72, 80
ONES = 0x3f803f80
LOG2E = 1.4426950408889634
GROUPS = [(1, [0, 1, 2, 3]), (1, [4, 5, 6]), (0, [0, 1, 2, 3, 4, 5, 6])]
```

```python
import sys
from sched import *
from mcommon import *

M16 = 'v_mfma_f32_16x16x32_bf16'
M16S = 'v_mfma_f32_16x16x16_bf16'
M32 = 'v_mfma_f32_32x32x16_bf16'
S32 = 'v_smfmac_f32_32x32x32_bf16'
S16 = 'v_smfmac_f32_16x16x64_bf16'
NAME = 'sequential_preLN__mha_block__mixer_gmlp__prompt_kernel'
MASK = 0x80000000

qX, qW, qS, qD, qWO, qWI, qSP, qB, qWU, qO = 4, 8, 12, 16, 20, 24, 28, 32, 36, 40
sR, sC, sW, sT, sBud, sa, sb, sl, sM0, sP, sRg, sM, t0, t1, t2, sPo, t3, t4, t5, t6 = range(44, 64)
mk1, mk2, mk3 = 64, 66, 68
sPC = 70
PROF0 = 72
L16, L16b, L16c, vRC, vCA, vCP, vOne, vPT = range(8)
ONE4 = 8
vL, vTau, vT0, vT1 = 12, 13, 14, 15
FR, NFR = 16, 16
H_ST1, H_CS1, H_KV, H_O0, H_O1, H_WIN, H_H, H_ST3, H_Z2, H_Y = range(10)
QX = 131072
RING = [131072, 0, 28672, 57344, 86016]
Q = lambda q: sr(q, 4)
T = lambda *a: ('t',) + a


class Mega:
    def __init__(self, **opt):
        self.o = dict(prof=None, upto='F', stat_after=4, limit=2.0 ** 64, pf=True, kvpre=3, kvd=5, lo=2.0 ** -30)
        self.o.update(opt)
        self.k = Kernel(NAME, 256, 256, 163840)
        self.k.force_vgpr = 512
        self.P = Prog()
        self.slow = []
        self.nf = 0
        self.nstamp = 0
        self.names = []

    def stamp_txt(self, name):
        i = self.nstamp
        assert PROF0 + 4 + i <= 101
        self.nstamp += 1
        self.names.append(name)
        ins = 's_memrealtime' if self.o['prof'] == 'rt' else 's_memtime'
        t = f'{ins} {sr(PROF0 + 2 * (i & 1), 2)}'
        if i:
            t += f'\ns_mov_b32 s{PROF0 + 3 + i}, s{PROF0 + 2 * ((i - 1) & 1)}'
        return t

    def stamp(self, S, name, **kw):
        if not self.o['prof']:
            return
        t = self.stamp_txt(name)
        if S is None:
            self.P.raw(t)
        else:
            S.marks.setdefault(S.nmain - 1, []).append(t)

    def spin(self, lab, back, issue, test):
        return (f'{lab}:\n{issue}\ns_waitcnt vmcnt(0)\n{test}\ns_cbranch_scc1 {back}\n'
                f's_sub_u32 s{sBud}, s{sBud}, 1\ns_cmp_gt_i32 s{sBud}, 0\ns_cbranch_scc1 {lab}')

    def poll_txt(self, addr, hop, two=False, thr=16):
        issue = f'v_mov_b32 v{vPT}, 0\nbuffer_atomic_add v{vPT}, v{addr}, {Q(qS)}, 0 offen offset:{hop * 128} sc0 sc1'
        test = f'v_readfirstlane_b32 s{sPo}, v{vPT}\n'
        if two:
            test += f'v_readlane_b32 s3, v{vPT}, 1\ns_min_u32 s{sPo}, s{sPo}, s3\n'
        test += f's_cmp_ge_u32 s{sPo}, {thr}'
        return issue, test

    def poll_hidden(self, S, addr, hop, at, chk, tok, dep=(), thr=16):
        issue, test = self.poll_txt(addr, hop, thr=thr)
        self.check_hidden(S, issue, test, at, chk, tok, dep)

    def check_hidden(self, S, issue, test, at, chk, tok, dep=()):
        slow, back = self.k.label('slow'), self.k.label('back')
        S.add(issue, at=at, by=at + 2, lat=chk - at, dep=dep)
        S.add(f'{test}\ns_cbranch_scc0 {slow}\n{back}:', at=chk, by=chk + 2, sig=[tok])
        self.slow.append(self.spin(slow, back, issue, test) + f'\ns_branch {back}')

    def poll_inline(self, addr, hop, two=False):
        issue, test = self.poll_txt(addr, hop, two)
        lab, back = self.k.label('spin'), self.k.label('ok')
        self.P.raw(self.spin(lab, back, issue, test) + f'\n{back}:')

    def arrive(self, addr, hop):
        return f'buffer_atomic_add v{vOne}, v{addr}, {Q(qS)}, 0 offen offset:{hop * 128} sc1'

    def pair(self, S, frs, pre=0, **kw):
        ms = []
        for rd, mf, dep, sig in frs:
            d = FR + 4 * (self.nf % NFR)
            self.nf += 1
            if not pre:
                for t in rd(d):
                    S.add(t, dep=dep, sig=sig)
            ms += mf(d)
        ex = set()
        for m in ms:
            ex |= Ins(m).srcAB
        out = []
        for i, m in enumerate(ms):
            out.append(S.add(m, main=True, wslot=(i == 0), extra=(ex if i == 0 else ()), **kw))
        return out

    def phase_a(self):
        k, P, o = self.k, self.P, self.o
        aK, aV, aQ = 80, 112, 144
        rb, xb, xd, wd, csb, csq = 176, 184, 188, 192, 196, 198
        vst, vrs, vcs, vks, vvs, vqw, vfl = 199, 200, 201, 202, 203, 204, 205
        nm, stl, rsv, cs, csa, csf, tmp = 208, 216, 220, 228, 244, 248, 252
        sd = aQ
        k.end = '.Lend'
        k('s_cmp_ge_u32 s2, 256')
        k(f's_cbranch_scc1 {k.end}')
        for q, off in ((qX, A_X), (qW, A_WQKV), (qS, A_WS), (qD, A_DBG), (qWO, A_WO), (qWI, A_WIN), (qSP, A_WSP), (qB, A_BSP),
                       (qWU, A_WOUT), (qO, A_OUT)):
            k(f's_load_dwordx2 {sr(q, 2)}, s[0:1], {off}')
        if o['prof']:
            k(self.stamp_txt('start'))
        k(f'''v_lshrrev_b32 v{vT0}, 6, v0
        v_and_b32 v{vL}, 63, v0
        v_readfirstlane_b32 s{sW}, v{vT0}
        s_and_b32 s{sR}, s2, 3
        s_lshl_b32 s{sR}, s{sR}, 2
        s_bfe_u32 s{sa}, s2, {3 | (2 << 16)}
        s_add_u32 s{sR}, s{sR}, s{sa}
        s_lshl_b32 s{sa}, s{sa}, 9
        s_mul_i32 s{sb}, s{sa}, 3072
        s_bfe_u32 s{sC}, s2, {2 | (1 << 16)}
        s_lshl_b32 s{sC}, s{sC}, 3
        s_lshr_b32 s3, s2, 5
        s_add_u32 s{sC}, s{sC}, s3
        s_lshl_b32 s{sT}, s{sR}, 2
        s_add_u32 s{sT}, s{sT}, s{sW}
        s_lshl_b32 s{sl}, s{sW}, 13
        v_lshrrev_b32 v{vT0}, 3, v{vL}
        v_lshrrev_b32 v{vT1}, 4, v{vL}
        v_xor_b32 v{vT1}, v{vT1}, v{vL}
        v_and_b32 v{vT1}, 7, v{vT1}
        v_and_b32 v{tmp}, 4, v{vT0}
        v_add_u32 v{tmp}, v{tmp}, v{vT0}
        s_lshl_b32 s3, s{sT}, 5
        v_add_u32 v{tmp}, s3, v{tmp}
        v_lshlrev_b32 v{tmp}, 11, v{tmp}
        v_lshl_add_u32 v{xd}, v{vT1}, 4, v{tmp}
        v_xor_b32 v{xd + 1}, 64, v{xd}
        v_add_u32 v{xd + 1}, {16 * 2048 - 1024}, v{xd + 1}
        v_add_u32 v{xd + 2}, {4 * 2048 - 2048}, v{xd}
        v_add_u32 v{xd + 3}, {4 * 2048 - 2048}, v{xd + 1}
        s_lshl_b32 s3, s{sW}, 4
        v_add_u32 v{tmp}, s3, v{vT0}
        v_mul_u32_u24 v{tmp}, 6144, v{tmp}
        v_and_b32 v{vT0}, 2, v{vT0}
        v_xor_b32 v{vT0}, v{vT0}, v{vL}
        v_and_b32 v{vT0}, 7, v{vT0}
        v_lshl_add_u32 v{tmp}, v{vT0}, 4, v{tmp}
        s_lshl_b32 s3, s{sC}, 7
        s_add_u32 s3, s3, 2048
        v_add_u32 v{wd}, s3, v{tmp}
        v_xor_b32 v{wd + 1}, 64, v{wd}
        v_add_u32 v{wd + 1}, {8 * 6144 - 1024}, v{wd + 1}
        s_mov_b32 s{qX + 2}, {S_ * D * 2}
        s_mov_b32 s{qX + 3}, 0x00020000
        s_mov_b32 s{qW + 2}, {D * 3 * D * 2}
        s_mov_b32 s{qW + 3}, 0x00020000
        s_mov_b32 s{qS + 2}, {256 * MB}
        s_mov_b32 s{qS + 3}, 0x00020000
        s_waitcnt lgkmcnt(0)''')
        if o.get('a_st'):
            self.stamp(None, 'arg')

        def kv_dma(i):
            slot = (i % 4) * 32768
            out = [f's_add_u32 m0, s{sl}, {slot}']
            out += [f'buffer_load_dwordx4 v{xd + p}, {Q(qX)}, s{sa} offen offset:{p * 1024} lds' for p in range(4)]
            out += [f's_add_u32 m0, s{sl}, {slot + 4096}']
            out += [f'buffer_load_dwordx4 v{wd + (p & 1)}, {Q(qW)}, s{sb} offen offset:{p * 1024} lds' for p in range(4)]
            out += [f's_add_u32 s{sa}, s{sa}, 128', f's_and_b32 s{sa}, s{sa}, 2047', f's_mul_i32 s{sb}, s{sa}, 3072']
            return out

        def q_dma(b):
            slot = b * 32768
            out = [f's_add_u32 m0, s{sl}, {slot}']
            out += [f'buffer_load_dwordx4 v{xd + p}, {Q(qW)}, s{sb} offen offset:{p * 1024} lds' for p in range(4)]
            out += [f's_add_u32 m0, s{sl}, {slot + 4096}', f's_add_u32 s{sb}, s{sb}, {64 * 6144}']
            out += [f'buffer_load_dwordx4 v{xd + p}, {Q(qW)}, s{sb} offen offset:{p * 1024} lds' for p in range(4)]
            out += [f's_add_u32 s{sa}, s{sa}, 512', f's_and_b32 s{sa}, s{sa}, 2047', f's_mul_i32 s{sb}, s{sa}, 3072']
            return out

        def stat_loads():
            P.lines(f'''s_and_b32 s3, s{sC}, 12
            s_add_u32 s{t0}, s3, s{sC}
            s_lshl_b32 s3, s{sT}, 5
            s_add_u32 s3, s3, s{t0}
            v_lshrrev_b32 v{vT0}, 5, v{vL}
            v_lshl_add_u32 v{tmp}, v{vT0}, 2, s3
            v_and_b32 v{vT1}, 31, v{vL}
            v_lshlrev_b32 v{tmp}, 11, v{tmp}
            v_lshl_add_u32 v{tmp}, v{vT1}, 4, v{tmp}''')
            for i in range(4):
                P.raw(f'buffer_load_dwordx4 {vr(sd + 4 * i, 4)}, v{tmp}, {Q(qX)}, 0 offen offset:{512 * i}')
        for i in range(4):
            if i == o['stat_after']:
                stat_loads()
            for t in kv_dma(i):
                P.raw(t, sig=[T('adma', i)] if 'lds' in t else ())
            if i == 0:
                if o['pf']:
                    lb = k.label('pc')
                    P.raw(f'''s_getpc_b64 {sr(sPC, 2)}
                    {lb}:
                    s_lshr_b32 s3, s2, 3
                    s_lshl_b32 s3, s3, 12
                    v_lshl_add_u32 v{tmp}, v0, 4, s3
                    v_min_u32 v{tmp}, .Lcodeend-{lb}-16, v{tmp}
                    v_mov_b32 v{tmp + 1}, s{sPC + 1}
                    v_add_co_u32 v{tmp}, vcc, s{sPC}, v{tmp}
                    v_addc_co_u32 v{tmp + 1}, vcc, 0, v{tmp + 1}, vcc
                    global_load_dwordx4 {vr(cs, 4)}, {vr(tmp, 2)}, off''')
                P.lines(f'''s_cmp_eq_u32 s2, 0
                s_cselect_b32 s{sM0}, 0, {hex(MASK)}
                v_lshrrev_b32 v{vT0}, 2, v0
                v_and_b32 v{vT1}, 3, v0
                v_lshlrev_b32 v{vT1}, 7, v{vT1}
                v_lshl_add_u32 v{vT0}, v{vT0}, 11, v{vT1}
                v_add_u32 v{vT0}, s{sM0}, v{vT0}
                v_mov_b32 v{vPT}, 0
                v_lshl_add_u32 v{vfl}, v0, 2, s{sM0}''')
                for i3 in range(3):
                    P.raw(f'buffer_store_dword v{vPT}, v{vT0}, {Q(qS)}, 0 offen offset:{CNT + 512 * i3} sc1', sig=[T('zero')])
        if o['stat_after'] >= 4:
            stat_loads()
        for q, sz in ((qD, 4), (qWO, D * D * 2), (qWI, D * F * 2), (qSP, S_ * S_ * 2), (qB, S_ * 2), (qWU, FH * D * 2), (qO, S_ * D * 2)):
            P.lines(f's_mov_b32 s{q + 2}, {sz}\ns_mov_b32 s{q + 3}, 0x00020000')
        a, b, c_, d_ = csf, csf + 1, csf + 2, csf + 3
        P.lines(f'''s_mov_b32 s{sBud}, 20000
        v_lshlrev_b32 v{L16}, 4, v{vL}
        v_mov_b32 v{vOne}, 1
        v_mov_b32 v{ONE4}, {hex(ONES)}
        v_mov_b32 v{ONE4 + 1}, {hex(ONES)}
        v_mov_b32 v{ONE4 + 2}, {hex(ONES)}
        v_mov_b32 v{ONE4 + 3}, {hex(ONES)}
        v_and_b32 v{a}, 15, v{vL}
        v_lshrrev_b32 v{b}, 4, v{vL}
        v_lshrrev_b32 v{c_}, 1, v{a}
        v_xor_b32 v{c_}, v{c_}, v{b}
        v_lshlrev_b32 v{c_}, 4, v{c_}
        v_lshl_add_u32 v{c_}, v{a}, 7, v{c_}
        v_add_u32 v{xb}, s{sl}, v{c_}
        v_xor_b32 v{xb + 1}, 64, v{xb}
        v_add_u32 v{xb + 2}, 0x10000, v{xb}
        v_add_u32 v{xb + 3}, 0x10000, v{xb + 1}
        v_lshrrev_b32 v{c_}, 5, v{vL}
        v_lshlrev_b32 v{c_}, 13, v{c_}
        v_and_b32 v{d_}, 1, v{b}
        v_lshl_add_u32 v{c_}, v{d_}, 10, v{c_}
        v_lshl_add_u32 v{c_}, v{d_}, 6, v{c_}
        v_lshrrev_b32 v{d_}, 2, v{a}
        v_lshl_add_u32 v{c_}, v{d_}, 7, v{c_}
        v_lshrrev_b32 v{d_}, 3, v{a}
        v_lshl_add_u32 v{c_}, v{d_}, 5, v{c_}
        v_and_b32 v{d_}, 3, v{a}
        v_lshl_add_u32 v{rb}, v{d_}, 3, v{c_}
        v_xor_b32 v{rb + 1}, 32, v{rb}
        v_xor_b32 v{rb + 2}, 64, v{rb}
        v_xor_b32 v{rb + 3}, 0x60, v{rb}
        v_add_u32 v{rb + 4}, 0x10000, v{rb}
        v_add_u32 v{rb + 5}, 0x10000, v{rb + 1}
        v_add_u32 v{rb + 6}, 0x10000, v{rb + 2}
        v_add_u32 v{rb + 7}, 0x10000, v{rb + 3}
        v_and_b32 v{vTau}, 12, v{a}
        v_add_u32 v{vTau}, v{vTau}, v{a}''')
        P.lines(f'''s_bfe_u32 s{t1}, s{sR}, {2 | (1 << 16)}
        s_lshl_b32 s3, s{sW}, 1
        s_add_u32 s3, s3, s{t1}
        s_and_b32 s{t2}, s3, 3
        s_lshl_b32 s{t2}, s{t2}, 5
        v_xor_b32 v{csb}, s{t2}, v{rb}
        s_lshr_b32 s3, s3, 2
        s_lshl_b32 s3, s3, 11
        s_lshr_b32 s{t2}, s{sR}, 3
        s_lshl_b32 s{t3}, s{t2}, 14
        s_add_u32 s3, s3, s{t3}
        v_add_u32 v{csb}, s3, v{csb}
        v_add_u32 v{csb + 1}, 0x10000, v{csb}
        s_lshl_b32 s3, s{sW}, 5
        v_xor_b32 v{csq}, s3, v{rb}
        s_lshl_b32 s3, s{t1}, 12
        s_add_u32 s3, s3, s{t3}
        v_add_u32 v{csq}, s3, v{csq}''')
        P.lines(f'''s_lshl_b32 s3, s{sC}, 2
        s_add_u32 s3, s3, s{sW}
        s_lshl_b32 s3, s3, 2
        s_and_b32 s{t3}, s{sR}, 3
        s_add_u32 s3, s3, s{t3}
        s_lshl_b32 s3, s3, 8
        v_add_u32 v{vcs}, s3, v{L16}
        v_mov_b32 v{d_}, {hex(MASK)}
        v_cmp_gt_u32 vcc, 16, v{vL}
        v_cndmask_b32 v{vcs}, v{d_}, v{vcs}, vcc
        s_lshl_b32 s{t1}, s{t1}, 1
        s_add_u32 s{t1}, s{t1}, s{t2}
        s_lshl_b32 s{t1}, s{t1}, 2
        s_add_u32 s{t4}, s{t1}, {CS1}
        s_lshr_b32 s{t5}, s{sR}, 2
        s_lshl_b32 s{t5}, s{t5}, 2
        s_add_u32 s{t5}, s{t5}, {CSQ}''')
        P.lines(f'''s_lshl_b32 s3, s{sT}, 11
        v_mov_b32 v{c_}, s3
        v_cmp_eq_u32 vcc, 0, v{vL}
        v_cndmask_b32 v{vRC}, v{d_}, v{c_}, vcc
        s_lshl_b32 s3, s{sC}, 2
        s_add_u32 s{t1}, s3, s{sW}
        s_lshl_b32 s{t1}, s{t1}, 11
        v_mov_b32 v{c_}, s{t1}
        v_cndmask_b32 v{vCP}, v{d_}, v{c_}, vcc
        v_add_lshl_u32 v{c_}, v{vL}, s3, 11
        s_cmp_eq_u32 s{sW}, 0
        s_cselect_b32 s3, 4, 0
        v_cmp_gt_u32 vcc, s3, v{vL}
        v_cndmask_b32 v{vCA}, v{d_}, v{c_}, vcc''')
        P.lines(f'''s_lshl_b32 s{t6}, s{sT}, 9
        s_add_u32 s{t6}, s{t6}, {ST1}
        s_lshl_b32 s3, s{sC}, 4
        v_lshrrev_b32 v{c_}, 5, v{vL}
        v_lshl_add_u32 v{vst}, v{c_}, 3, s3
        s_lshl_b32 s3, s{t0}, 2
        v_lshl_add_u32 v{vrs}, v{c_}, 4, s3
        v_and_b32 v{c_}, 31, v{vL}
        v_cmp_eq_u32 vcc, 0, v{c_}
        v_cndmask_b32 v{vst}, v{d_}, v{vst}, vcc
        v_cndmask_b32 v{vrs}, v{d_}, v{vrs}, vcc''')
        P.lines(f'''v_lshrrev_b32 v{c_}, 5, v{vL}
        v_and_b32 v{d_}, 1, v{b}
        v_lshl_add_u32 v{vks}, v{c_}, 5, v{vTau}
        v_lshl_add_u32 v{vks}, v{d_}, 2, v{vks}
        v_lshlrev_b32 v{vks}, 4, v{vks}
        v_and_b32 v{vvs}, 8, v{a}
        v_add_u32 v{vvs}, v{vvs}, v{a}
        v_lshl_add_u32 v{vvs}, v{d_}, 5, v{vvs}
        v_lshl_add_u32 v{vvs}, v{c_}, 6, v{vvs}
        v_lshlrev_b32 v{vvs}, 4, v{vvs}
        v_lshl_add_u32 v{vqw}, v{c_}, 5, v{a}
        v_lshl_add_u32 v{vqw}, v{d_}, 6, v{vqw}
        s_lshl_b32 s3, s{sW}, 12
        s_add_u32 s3, s3, {QX}
        v_lshl_add_u32 v{vqw}, v{vqw}, 4, s3''')

        S = Seg('A')
        g_stat, g_flag, g_arr, b_cs, g_poll, g_chk = o.get('a_t', (72, 100, 170, 7, 300, 380))

        def tr(d, base, addr, t):
            a_ = addr + 512 * t
            return f'ds_read_b64_tr_b16 {vr(d + 2 * t, 2)}, v{base + 4 * (a_ >> 16)} offset:{a_ & 65535}'

        def split_store(acc, so, tok):
            ops = S.lines(f'''v_cvt_pk_bf16_f32 v{acc + 1}, v{acc}, v{acc}
            v_and_b32 v{acc + 2}, 0xffff0000, v{acc + 1}
            v_sub_f32 v{acc + 2}, v{acc}, v{acc + 2}
            v_cvt_pk_bf16_f32 v{acc + 1}, v{acc}, v{acc + 2}''')
            ops.append(S.add(f'buffer_store_dword v{acc + 1}, v{vcs}, {Q(qS)}, s{so} offen sc1', sig=[tok]))
            return ops

        for i in range(16):
            slot = (i % 4) * 32768
            dep = [T('adma', i), T('ard', i - 1)]
            if i == 1:
                dep.append(T('zero'))
            if i == b_cs:
                dep.append(T('cs1'))
            S.add('s_barrier', dep=dep, sig=[T('afull', i)])
            if i == 0 or i in o.get('a_st', ()):
                self.stamp(S, f'a{i}')
            if i == 1:
                S.add(f'buffer_store_dword v{vOne}, v{vfl}, {Q(qD)}, 0 offen sc1', dep=[T('afull', 1)], by=34)
            if i == b_cs:
                S.add(self.arrive(vCA, H_CS1), dep=[T('afull', i), T('flag')], by=32 * i + 2)
            if i >= 1:
                j = i + 3
                if j == 16:
                    ops = S.lines(f'''s_lshr_b32 s3, s{sW}, 1
                    s_mul_i32 s3, s3, {96 * 6144}
                    s_sub_u32 s3, s3, 2048
                    v_add_u32 v{xd}, s3, v{wd}
                    v_add_u32 v{xd + 1}, s3, v{wd + 1}
                    v_add_u32 v{xd + 2}, {32 * 6144 - 2048}, v{xd}
                    v_add_u32 v{xd + 3}, {32 * 6144 - 2048}, v{xd + 1}''')
                ops = []
                for t in (kv_dma(j) if j < 16 else q_dma(j - 16)):
                    x = S.add(t, dep=[T('afull', i)] if 'lds' in t else (), sig=[T('adma', j)] if 'lds' in t else ())
                    if 'lds' in t:
                        ops.append(x)
                S.spread(ops, 32 * i - 8, 32 * i + 24, 2)
            if i == 2:
                s_, q_, tt = aQ + 16, aQ + 17, aQ + 18
                ops = []
                for d in range(16):
                    ops.append(S.add(f'v_dot2_f32_bf16 v{s_}, v{sd + d}, v{ONE4}, ' + ('0' if d == 0 else f'v{s_}')))
                    ops.append(S.add(f'v_dot2_f32_bf16 v{q_}, v{sd + d}, v{sd + d}, ' + ('0' if d == 0 else f'v{q_}')))
                for n in (8, 4, 2, 1):
                    for x in (s_, q_):
                        ops.append(S.add(f'v_add_f32_dpp v{x}, v{x}, v{x} row_ror:{n} row_mask:0xf bank_mask:0xf'))
                ops += S.lines(f'''v_mov_b32 v{tt}, v{s_}
                v_mov_b32 v{tt + 1}, v{q_}
                v_permlane16_swap_b32 v{s_}, v{tt}
                v_permlane16_swap_b32 v{q_}, v{tt + 1}
                v_add_f32 v{s_}, v{s_}, v{tt}
                v_add_f32 v{q_}, v{q_}, v{tt + 1}
                v_mul_f32 v{s_}, {hexf(-1.0 / D)}, v{s_}
                v_mul_f32 v{q_}, {hexf(1.0 / D)}, v{q_}
                v_fma_f32 v{q_}, -v{s_}, v{s_}, v{q_}
                v_max_f32 v{q_}, 0, v{q_}
                v_add_f32 v{q_}, {hexf(1e-5)}, v{q_}
                v_rsq_f32 v{q_}, v{q_}
                v_cvt_pk_bf16_f32 v{s_}, v{s_}, v{s_}''')
                ops.append(S.add(f'buffer_store_dwordx2 {vr(s_, 2)}, v{vst}, {Q(qS)}, s{t6} offen sc1', sig=[T('st1')]))
                ops.append(S.add(f'buffer_store_dword v{q_}, v{vrs}, {Q(qS)}, s{t6} offen offset:256 sc1', sig=[T('st1')]))
                S.spread(ops, g_stat, g_stat + 40, 0)
                self.check_hidden(S, f'buffer_load_dword v{vPT}, off, {Q(qD)}, 0 sc1',
                                  f'v_readfirstlane_b32 s{sPo}, v{vPT}\ns_cmp_ge_u32 s{sPo}, 1', g_flag, g_arr - 4, T('flag'))
                S.add(self.arrive(vRC, H_ST1), dep=[T('st1'), T('flag')], at=g_arr, by=g_arr)
            if i == 9:
                self.poll_hidden(S, vRC, H_ST1, g_poll, g_poll + 60, T('ok', H_ST1))
                self.poll_hidden(S, vCP, H_CS1, g_poll + 62, g_poll + 120, T('ok', H_CS1))
                ops = S.lines(f'''v_and_b32 v{tmp}, 0xf0, v{L16}
                v_lshrrev_b32 v{tmp + 1}, 4, v{vL}
                v_lshlrev_b32 v{tmp + 1}, 5, v{tmp + 1}
                s_lshl_b32 s{t1}, s{sC}, 12
                s_add_u32 s{t1}, s{t1}, {CS1}''', at=g_poll)
                S.add(f'buffer_load_dwordx4 {vr(stl, 4)}, v{tmp}, {Q(qS)}, s{t6} offen sc1', dep=[T('ok', H_ST1)], lat=60)
                for u in range(2):
                    S.add(f'buffer_load_dwordx4 {vr(rsv + 4 * u, 4)}, v{tmp + 1}, {Q(qS)}, s{t6} offen offset:{256 + 16 * u} sc1',
                          dep=[T('ok', H_ST1)], lat=60)
                for m in range(4):
                    S.add(f'buffer_load_dwordx4 {vr(cs + 4 * m, 4)}, v{L16}, {Q(qS)}, s{t1} offen offset:{1024 * m} sc1',
                          dep=[T('ok', H_CS1)], lat=60)
                for u in range(2):
                    for e in range(4):
                        S.add(f'v_mov_b32 v{nm + 4 * u + e}, v{stl + 2 * u}')
            if i < 4:
                for t in range(2):
                    a_ = slot + 4096 + 512 * t
                    S.add(f'ds_read_b64_tr_b16 {vr(csf + 2 * t, 2)}, v{csb + (a_ >> 16)} offset:{a_ & 65535}',
                          dep=[T('afull', i)], sig=[T('ard', i)], at=32 * i, by=32 * i + 4)
                S.add(f'{M16} {vr(csa, 4)}, {vr(ONE4, 4)}, {vr(csf, 4)}, ' + ('0' if i == 0 else vr(csa, 4)), by=32 * i + 16)
                if i == 3:
                    S.ramp(split_store(csa, t4, T('cs1')), 32 * i + 20, 32 * i + 30)
            for ks in range(2):
                kk = 2 * i + ks
                for u in range(2):
                    a_ = slot + 2048 * u
                    S.add(f'ds_read_b128 {ar(8 * kk + 4 * u, 4)}, v{xb + ks + 2 * (a_ >> 16)} offset:{a_ & 65535}',
                          dep=[T('afull', i)], sig=[T('ard', i)])
                for n0 in range(0, 8, 2):
                    frs = []
                    for n in (n0, n0 + 1):
                        isv = n >> 2
                        rd = lambda d, n=n, isv=isv: [tr(d, rb + (n & 3), slot + ks * 16384 + 4096 + 2048 * isv, t) for t in range(2)]

                        def mf(d, n=n, isv=isv):
                            out = []
                            for u in range(2):
                                x = ar(8 * kk + 4 * u, 4)
                                if isv:
                                    c = vr(aV + ((n & 3) * 2 + u) * 4, 4)
                                    out.append(f'{M16} {c}, {x}, {vr(d, 4)}, ' + (c if kk else '0'))
                                else:
                                    c = vr(aK + (((n >> 1) * 2 + u) * 2 + (n & 1)) * 4, 4)
                                    out.append(f'{M16} {c}, {vr(d, 4)}, {x}, ' + (c if kk else '0'))
                            return out
                        frs.append((rd, mf, [T('afull', i)], [T('ard', i)]))
                    self.pair(S, frs)
        for n in range(8):
            for u in range(2):
                csr = vr(cs + 2 * n, 2)
                if n >> 2:
                    c = vr(aV + ((n & 3) * 2 + u) * 4, 4)
                    S.add(f'{M16S} {c}, {vr(nm + 4 * u, 2)}, {csr}, {c}', main=True)
                else:
                    c = vr(aK + (((n >> 1) * 2 + u) * 2 + (n & 1)) * 4, 4)
                    S.add(f'{M16S} {c}, {csr}, {vr(nm + 4 * u, 2)}, {c}', main=True)
        self.stamp(S, 'kv')
        g0 = S.nmain
        e_len, g_karr, g_kpoll, g_kchk = o.get('q_t', (24, 110, 160, 196))
        ops = S.lines(f'''s_lshl_b32 s{t1}, s{sC}, 19
        s_lshl_b32 s3, s{sT}, 12
        s_add_u32 s{t1}, s{t1}, s3
        s_add_u32 s{t1}, s{t1}, {KV}
        s_add_u32 s{t2}, s{t1}, {1 << 18}''', at=g0 - 30)
        ops = []
        for hh in range(2):
            for u in range(2):
                b_ = aK + (hh * 2 + u) * 8
                ops += [S.add(f'v_mul_f32 v{b_ + e}, v{b_ + e}, v{stl + 1 + 2 * u}') for e in range(8)]
                ops += [S.add(f'v_cvt_pk_bf16_f32 v{b_ + e}, v{b_ + 2 * e}, v{b_ + 2 * e + 1}') for e in range(4)]
            b_ = aK + hh * 16
            ops += [S.add(f'v_permlane16_swap_b32 v{b_ + e}, v{b_ + 8 + e}') for e in range(4)]
            for f in range(2):
                ops.append(S.add(f'buffer_store_dwordx4 {vr(b_ + 8 * f, 4)}, v{vks}, {Q(qS)}, s{(t1, t2)[hh]} offen offset:{1024 * f} sc1',
                                 sig=[T('kvst')]))
        for n in range(4):
            b_ = aV + n * 8
            ops += [S.add(f'v_mul_f32 v{b_ + e}, v{b_ + e}, v{rsv + e}') for e in range(8)]
            ops += [S.add(f'v_cvt_pk_bf16_f32 v{b_ + e}, v{b_ + 2 * e}, v{b_ + 2 * e + 1}') for e in range(4)]
            ops.append(S.add(f'buffer_store_dwordx4 {vr(b_, 4)}, v{vvs}, {Q(qS)}, s{(t1, t2)[n >> 1]} offen offset:{2048 + 128 * (n & 1)} sc1',
                             sig=[T('kvst')]))
        S.ramp(ops, g0 - 8, g0 + e_len)
        for b in range(4):
            i = 16 + b
            S.add('s_barrier', dep=[T('adma', i), T('ard', i - 1)], sig=[T('afull', i)])
            if i in o.get('a_st', ()):
                self.stamp(S, f'a{i}')
            if b == 0:
                ops = []
                for t in q_dma(3):
                    x = S.add(t, dep=[T('afull', i)] if 'lds' in t else (), sig=[T('adma', 19)] if 'lds' in t else ())
                    if 'lds' in t:
                        ops.append(x)
                S.spread(ops, 32 * i - 8, 32 * i + 8, 2)
                for ks in range(2):
                    for t in range(2):
                        S.add(f'ds_read_b64_tr_b16 {vr(csf + 2 * t, 2)}, v{csq} offset:{2048 * ks + 512 * t}',
                              dep=[T('afull', i)], sig=[T('ard', i)], by=g0 - 20 + 10 * ks)
                    S.add(f'{M16} {vr(csa, 4)}, {vr(ONE4, 4)}, {vr(csf, 4)}, ' + ('0' if ks == 0 else vr(csa, 4)), by=g0 - 12 + 10 * ks)
                S.ramp(split_store(csa, t5, T('kvst')), g0 + 2, g0 + 8)
                S.add('s_barrier', dep=[T('kvst')], sig=[T('kvall')], at=g0 + g_karr, by=g0 + g_karr)
                S.add(self.arrive(vCA, H_KV), dep=[T('kvall')], by=g0 + g_karr)
                self.poll_hidden(S, vCP, H_KV, g0 + g_kpoll, g0 + g_kchk, T('ok', H_KV))
                S.lines(f'''s_lshl_b32 s{t1}, s{sC}, 12
                s_add_u32 s{t1}, s{t1}, {CSQ}
                s_and_b32 s3, s{sW}, 1
                s_lshl_b32 s{sP}, s{sC}, 1
                s_add_u32 s{sP}, s{sP}, s3
                s_lshl_b32 s{sP}, s{sP}, 1
                s_lshr_b32 s3, s{sW}, 1
                s_add_u32 s{sP}, s{sP}, s3
                s_lshl_b32 s{sP}, s{sP}, 17
                s_add_u32 s{sP}, s{sP}, {KV}''', at=g0 + g_kpoll)
                for n in range(4):
                    S.add(f'buffer_load_dwordx4 {vr(cs + 4 * n, 4)}, v{L16}, {Q(qS)}, s{t1} offen offset:{1024 * n} sc1',
                          dep=[T('ok', H_KV)], lat=30, by=g0 + g_kchk + 4 + n)
            for ks in range(8):
                kk = 8 * b + ks
                for n0 in range(0, 4, 2):
                    frs = []
                    for n in (n0, n0 + 1):
                        rd = lambda d, n=n: [tr(d, rb + n, b * 32768 + (ks & 3) * 2048 + (ks >> 2) * 16384, t) for t in range(2)]

                        def mf(d, n=n):
                            out = []
                            for u in range(2):
                                c = vr(aQ + (((n >> 1) * 2 + u) * 2 + (n & 1)) * 4, 4)
                                out.append(f'{M16} {c}, {vr(d, 4)}, {ar(8 * kk + 4 * u, 4)}, ' + (c if kk else '0'))
                            return out
                        frs.append((rd, mf, [T('afull', i)], [T('ard', i)]))
                    self.pair(S, frs)
        ops = []
        for t in range(o['kvpre']):
            for f in range(4):
                ops.append(S.add(f'buffer_load_dwordx4 {ar(16 * t + 4 * f, 4)}, v{L16}, {Q(qS)}, s{sP} offen offset:{1024 * f} sc1',
                                 dep=[T('ok', H_KV)]))
            S.add(f's_add_u32 s{sP}, s{sP}, 4096')
        S.spread(ops, g0 + g_kchk + 8, g0 + 262, 1)
        S.lines(f'''v_mul_f32 v{stl + 1}, {hexf(32 ** -0.5 * LOG2E)}, v{stl + 1}
        v_mul_f32 v{stl + 3}, {hexf(32 ** -0.5 * LOG2E)}, v{stl + 3}''', by=g0 + 200)
        for n in range(4):
            for u in range(2):
                c = vr(aQ + (((n >> 1) * 2 + u) * 2 + (n & 1)) * 4, 4)
                S.add(f'{M16} {c}, {vr(cs + 4 * n, 4)}, {vr(nm + 4 * u, 4)}, {c}', main=True)
        self.stamp(S, 'q')
        if o['upto'] >= 'B':
            import mega_b
            mega_b.setup(self, S, g0, xb)
        P.seg(S)
        for hh in range(2):
            for u in range(2):
                b_ = aQ + (hh * 2 + u) * 8
                P.lines('\n'.join(f'v_mul_f32 v{b_ + e}, v{b_ + e}, v{stl + 1 + 2 * u}' for e in range(8)))
                P.lines('\n'.join(f'v_cvt_pk_bf16_f32 v{b_ + e}, v{b_ + 2 * e}, v{b_ + 2 * e + 1}' for e in range(4)))
                P.raw(f'ds_write_b128 v{vqw}, {vr(b_, 4)} offset:{hh * 2048 + u * 256}', sig=[T('qw')])

    def finish(self):
        k, P, o = self.k, self.P, self.o
        P.emit(k)
        if o['upto'] < 'F':
            k('s_waitcnt vmcnt(0) lgkmcnt(0)')
        if o['prof']:
            k('s_waitcnt vmcnt(0) lgkmcnt(0)')
            k(self.stamp_txt('end'))
            k(f's_lshl_b32 s3, s2, 2\ns_add_u32 s3, s3, s{sW}\ns_lshl_b32 s3, s3, 7\ns_add_u32 s3, s3, {TJ}')
            k('s_waitcnt lgkmcnt(0)')
            k('v_mov_b32 v0, 0')
            for i in range(self.nstamp):
                k(f'v_writelane_b32 v0, s{PROF0 + 4 + i if i < self.nstamp - 1 else PROF0 + 2 * (i & 1)}, {i}')
            k(f's_getreg_b32 s{t0}, hwreg(HW_REG_XCC_ID)')
            k(f'v_writelane_b32 v0, s{t0}, 30')
            k(f'v_writelane_b32 v0, s{sBud}, 31')
            k(f'v_lshlrev_b32 v1, 2, v{vL}')
            k('s_mov_b32 exec_hi, 0')
            k(f'buffer_store_dword v0, v1, {Q(qS)}, s3 offen')
        k('.Lend:')
        k('s_endpgm')
        for t in self.slow:
            k(t)
        k('.Lcodeend:')
        k('s_endpgm')


def build(path, **opt):
    import mega_b, mega_c
    for kk in list(opt):
        if kk in CFG:
            CFG[kk] = opt.pop(kk)
    m = Mega(**opt)
    m.phase_a()
    up = m.o['upto']
    if up >= 'B':
        mega_b.phase_b(m)
    if up == 'B':
        mega_c.tail_b(m)
    if up >= 'C':
        mega_c.phase_c(m)
    if up >= 'D':
        mega_c.phase_de(m)
    if up >= 'F':
        mega_c.phase_f(m)
    m.finish()
    txt = build_file([m.k], verbose=opt.get('verbose', 1))
    if m.o['prof']:
        txt = txt.replace('.text', '; stamps: ' + ' '.join(m.names) + '\n.text', 1)
    open(path, 'w').write(txt)
    print(path, len(txt), 'bytes')
    return m
```

```python
from mega import *

O_, L_ = 80, 184
SB = [144, 160, 208]
aQF, aONE, aWI, aSP = 128, 160, 192, 224
vIdx, vOA, vOP, vOs = 200, 201, 202, 203
vCA2, vXw, vXr = 205, 206, 207
vQ0, vQ1, vWi, vWiR = 224, 225, 226, 227
vWiS, vWiC, vSp0, vSp1, vSpR0, vSpR1, vWo, vX, vLw, vLr, tb = 244, 245, 246, 247, 248, 249, 250, 251, 252, 253, 254
SWI = [64, 65, 66, 67, 68, 69, t5, t6]
XR = 64
XCH, LX = 131072, 124 * 1024
WQ = 31 * 1024


def setup(m, S, g0, xb):
    t, u = tb, tb + 1
    ops = S.lines(f'''s_mul_i32 s{sRg}, s{sW}, {WQ}
    s_lshl_b32 s{sM0}, s{sRg}, 4
    s_sub_u32 s3, s{sRg}, s{sl}
    s_add_u32 s3, s3, 8192
    v_add_u32 v{vSpR0}, s3, v{xb}
    v_xor_b32 v{vSpR1}, 64, v{vSpR0}
    v_mov_b32 v{vIdx}, 0xdddddddd
    s_and_b32 s{t3}, s{sW}, 1
    s_and_b32 s{t4}, s{sW}, 2
    s_lshl_b32 s3, s{t4}, 1
    s_add_u32 s3, s3, s{t3}
    s_lshl_b32 s3, s3, 11
    s_add_u32 s3, s3, {QX}
    v_add_u32 v{vQ1}, s3, v{L16}
    v_xor_b32 v{vQ0}, 0x2000, v{vQ1}
    s_lshl_b32 s3, s{sW}, 13
    s_add_u32 s3, s3, {XCH}
    v_add_u32 v{vXw}, s3, v{L16}
    v_xor_b32 v{vXr}, 0x4000, v{vXw}
    s_lshl_b32 s3, s{sW}, 9
    s_add_u32 s3, s3, {LX}
    v_lshl_add_u32 v{vLw}, v{vL}, 2, s3
    v_xor_b32 v{vLr}, 0x400, v{vLw}
    v_mov_b32 v{u}, {hex(MASK)}''')
    ops += S.lines(f'''s_lshl_b32 s3, s{sR}, 2
    s_add_u32 s3, s3, s{t4}
    s_lshl_b32 s3, s3, 4
    s_add_u32 s3, s3, s{t3}
    s_lshl_b32 s3, s3, 7
    v_lshl_add_u32 v{vOA}, v{vL}, 11, s3
    s_lshl_b32 s3, s{sT}, 11
    v_lshl_add_u32 v{vOP}, v{vL}, 7, s3
    v_cmp_gt_u32 vcc, 2, v{vL}
    v_cndmask_b32 v{vOA}, v{u}, v{vOA}, vcc
    v_cndmask_b32 v{vOP}, v{u}, v{vOP}, vcc
    s_lshl_b32 s3, s{sC}, 2
    v_add_lshl_u32 v{vCA2}, v{vL}, s3, 11
    v_cmp_gt_u32 vcc, 4, v{vL}
    v_cndmask_b32 v{vCA2}, v{u}, v{vCA2}, vcc''')
    ops += S.lines(f'''v_and_b32 v{vOs}, 0xf0, v{L16}
    v_bfe_u32 v{t}, v{vL}, 4, 1
    v_lshl_add_u32 v{vOs}, v{t}, 10, v{vOs}
    v_lshrrev_b32 v{t}, 5, v{vL}
    v_lshl_add_u32 v{vOs}, v{t}, 8, v{vOs}''')
    a0, a1 = vSp0, vSp1
    ops += S.lines(f'''v_lshrrev_b32 v{t}, 4, v{vL}
    s_lshl_b32 s3, s{t4}, 1
    s_and_b32 s{t1}, s{sC}, 1
    s_sub_u32 s3, s3, s{t1}
    v_add_u32 v{t}, s3, v{t}
    v_min_u32 v{t}, 6, v{t}
    v_lshrrev_b32 v{a0}, 2, v{t}
    v_mul_u32_u24 v{a0}, s{t3}, v{a0}
    s_mul_i32 s3, s{t3}, 231
    s_sub_u32 s3, 231, s3
    s_lshl_b32 s{t1}, s{sC}, 9
    s_add_u32 s3, s3, s{t1}
    s_add_u32 s3, s3, {WIN >> 10}
    v_add_u32 v{t}, s3, v{t}
    v_lshl_add_u32 v{t}, v{a0}, 7, v{t}
    s_mul_i32 s3, s{t3}, 3
    s_sub_u32 s3, 7, s3
    v_sub_u32 v{a1}, s3, v{a0}
    v_lshl_add_u32 v{vWiC}, v{a1}, 5, v{t}
    s_lshl_b32 s3, s{sR}, 1
    v_mad_u32_u24 v{a0}, v{a1}, s3, v{t}
    v_add_lshl_u32 v{a1}, v{a1}, v{a0}, 10
    v_lshlrev_b32 v{a0}, 10, v{a0}''')
    for i in range(8):
        ops.append(S.add(f'v_readlane_b32 s{SWI[i]}, v{(a0, a1)[i >> 2]}, {16 * (i & 3)}'))
    ops += S.lines(f'''s_lshr_b32 s3, s{sR}, 2
    s_lshl_b32 s3, s3, 6
    s_and_b32 s{t1}, s{sR}, 3
    s_add_u32 s3, s3, s{t1}
    s_lshl_b32 s3, s3, 2
    v_and_b32 v{t}, 0xf0, v{L16}
    v_lshl_add_u32 v{vWiC}, v{vWiC}, 10, v{t}
    v_add_u32 v{vWiC}, s3, v{vWiC}
    s_lshl_b32 s{sM}, s{t4}, 30
    s_lshl_b32 s3, s{t4}, 3
    s_sub_u32 s3, 64, s3
    v_cmp_gt_u32 vcc, s3, v{vL}
    v_cndmask_b32 v{vWiC}, v{u}, v{vWiC}, vcc
    v_add_u32 v{vWiS}, s{sM}, v{L16}
    v_lshrrev_b32 v{t}, 2, v{vL}
    v_lshlrev_b32 v{vWiR}, 7, v{t}
    v_bfe_u32 v{t}, v{vL}, 3, 2
    v_lshl_add_u32 v{vWiR}, v{t}, 5, v{vWiR}
    v_and_b32 v{t}, 3, v{vL}
    v_lshl_add_u32 v{vWiR}, v{t}, 3, v{vWiR}
    v_add_u32 v{vWiR}, s{sRg}, v{vWiR}''')
    ops += S.lines(f'''v_lshrrev_b32 v{t}, 3, v{vL}
    v_and_b32 v{u}, 4, v{t}
    v_add_u32 v{u}, v{u}, v{t}
    s_lshl_b32 s3, s{sT}, 5
    v_add_lshl_u32 v{vSp0}, v{u}, s3, 12
    v_lshrrev_b32 v{u}, 4, v{vL}
    v_xor_b32 v{vSp1}, v{u}, v{vL}
    v_and_b32 v{vSp1}, 7, v{vSp1}
    v_lshl_add_u32 v{vSp0}, v{vSp1}, 4, v{vSp0}
    s_lshl_b32 s3, s{sC}, 8
    v_add_u32 v{vSp0}, s3, v{vSp0}
    v_xor_b32 v{vSp1}, 64, v{vSp0}
    v_lshlrev_b32 v{vWo}, 1, v{u}
    v_xor_b32 v{vWo}, v{vWo}, v{vL}
    v_and_b32 v{vWo}, 7, v{vWo}
    s_sub_u32 s3, 8, s{t4}
    v_cmp_gt_u32 vcc, s3, v{vWo}
    v_lshlrev_b32 v{vWo}, 4, v{vWo}
    s_mul_i32 s3, s{sR}, {64 * F * 2}
    s_mul_i32 s{t1}, s{t3}, {FH * 2}
    s_add_u32 s3, s3, s{t1}
    s_mul_i32 s{t1}, s{sC}, 224
    s_add_u32 s3, s3, s{t1}
    s_lshl_b32 s{t1}, s{t4}, 6
    s_add_u32 s3, s3, s{t1}
    v_mul_u32_u24 v{vWi}, {F * 2}, v{t}
    v_add3_u32 v{vWi}, v{vWi}, v{vWo}, s3
    v_mov_b32 v{vX}, {hex(MASK)}
    v_cndmask_b32 v{vWi}, v{vX}, v{vWi}, vcc
    v_lshl_add_u32 v{vWo}, v{t}, 11, v{vWo}
    s_lshl_b32 s{t1}, s{sC}, 7
    v_add_u32 v{vWo}, s{t1}, v{vWo}
    v_and_b32 v{vX}, 1, v{u}
    v_lshlrev_b32 v{vX}, 5, v{vX}
    v_lshrrev_b32 v{u}, 1, v{u}
    v_lshl_add_u32 v{vX}, v{u}, 4, v{vX}
    s_lshl_b32 s3, s{sT}, 5
    v_add_lshl_u32 v{u}, v{vTau}, s3, 11
    v_add3_u32 v{vX}, v{vX}, v{u}, s{t1}
    v_and_b32 v{t}, 4, v{vL}
    v_cmp_eq_u32 vcc, 0, v{t}
    v_cndmask_b32 v{tb}, 0, v{ONE4}, vcc
    v_cndmask_b32 v{tb + 1}, v{ONE4}, 0, vcc''')
    ops += [S.add(f'v_mov_b32 v{O_ + i}, 0') for i in range(64)]
    ops += [S.add(f'v_mov_b32 v{L_ + i}, 0') for i in range(16)]
    S.ramp(ops, g0 + 40, g0 + 250)
    for x in ops:
        x.at = g0 + 30
    S.lines('\n'.join(f'v_accvgpr_write_b32 a{aONE + i}, v{tb + (i >> 1)}' for i in range(4)), by=g0 + 255)


def phase_b(m):
    k, P, o = m.k, m.P, m.o
    P.raw('s_barrier', dep=[T('qw')])
    for i in range(4):
        for f in range(2):
            P.raw(f'ds_read_b128 {ar(aQF + 8 * i + 4 * f, 4)}, v{(vQ0, vQ1)[i >> 1]} offset:{(i & 1) * 4096 + f * 1024}')
    seq = [(t, i) for t in range(30) for i in range(4)] + [(30, 0), (30, 1), (31, 0), (31, 1), (30, 2), (30, 3), (31, 2), (31, 3)]
    NB = len(seq)
    KVr = lambda t, f: ar(16 * (t % 8) + 4 * f, 4)
    QF = lambda i, f: ar(aQF + 8 * i + 4 * f, 4)
    S = Seg('B')
    ex = lambda s, a, b: '\n'.join(f'v_exp_f32 v{s + e}, v{s + e}' for e in range(a, b))
    gap = lambda n, j: 6 * n + j
    seen = set()

    def qk(n, f, tail=None, **kw):
        t, i = seq[n]
        s = vr(SB[n % 3], 16)
        e = ()
        if t not in seen:
            seen.add(t)
            e = regs('a', 16 * (t % 8), 16) if t else regs('a', 0, 8)
        S.add(f'{M32} {s}, {KVr(t, f)}, {QF(i, f)}, ' + (s if f else '0'), main=True, tail=tail, gapb=0, nfree=1, extra=e, wslot=bool(e), **kw)

    def pv(n, f, tail1, tail2):
        t, i = seq[n]
        p = vr(SB[n % 3] + 8 * f, 8)
        S.add(f'{S32} {vr(O_ + 16 * i, 16)}, {KVr(t, 2 + f)}, {p}, v{vIdx}', main=True, tail=tail1, gapb=0, nfree=2)
        S.add(f'{S16} {vr(L_ + 4 * i, 4)}, {ar(aONE, 4)}, {p}, v{vIdx}', main=True, tail=tail2, gapb=8, nfree=2)

    side = {}

    def at(n, text, j=2, pre='', post='', **kw):
        side.setdefault(n, []).append((j, pre, text, post, kw))
    ld = [(t, f) for t in range(o['kvpre'], 32) for f in range(4)]
    n, li = 0, 0
    p0, p1 = o.get('pause', (0, 0))
    mind = 99
    while li < len(ld):
        cnt = 0
        while li + cnt < len(ld) and cnt < 2 and not p0 <= n < p1 and 4 * (ld[li + cnt][0] - o['kvd']) + ld[li + cnt][1] <= n:
            cnt += 1
        for j in ((), (5,), (2, 5))[cnt]:
            t, f = ld[li]
            li += 1
            mind = min(mind, 4 * t - 1 - n)
            at(n, f'buffer_load_dwordx4 {KVr(t, f)}, v{L16}, {Q(qS)}, s{sP} offen offset:{1024 * f} sc1', j, lat=0,
               post=f's_add_u32 s{sP}, s{sP}, 4096' if f == 3 else '')
        n += 1
    print('K/V minimum lead (bodies):', mind)
    for i, (name, n) in enumerate(o.get('touch', {}).items()):
        q, lines = {'wo': (qWO, 16), 'wu': (qWU, 28), 'wi': (qWI, 56), 'sp': (qSP, 64)}[name]
        tv = FR + 24 + i
        at(n - 1, f'''v_add_u32 v{tv}, s3, v{vL}
        v_lshlrev_b32 v{tv}, 7, v{tv}
        v_cmp_gt_u32 vcc, {lines}, v{vL}
        v_cndmask_b32 v{tv}, 2.0, v{tv}, vcc''', 5, pre=f's_lshl_b32 s3, s2, 2\ns_add_u32 s3, s3, s{sW}\ns_mul_i32 s3, s3, {lines}')
        at(n, f'buffer_load_dword v{tv}, v{tv}, {Q(q)}, 0 offen', lat=0)
    bt = dict(wi=(16, 3), sp=(40, 3), woA=(17, 3), wir=(58, 1), wis=(60, 3), spr=(82, 1), sps=(84, 3), woB=(68, 2), woC=(92, 2),
              arr=100, x=108, poll=108, chk=120)
    bt.update(o.get('b_t', {}))
    tm = lambda name, i: bt[name][0] + int(bt[name][1] * i)
    b_arr, b_x, b_poll, b_chk = bt['arr'], bt['x'], bt['poll'], bt['chk']
    for i in range(8):
        at(tm('wi', i), f'buffer_load_dwordx4 v{vWi}, {Q(qWI)}, s{sa} offen lds', sig=[T('wid', i)], lat=0,
           pre=f's_add_u32 m0, s{sRg}, {1024 * i}\ns_mov_b32 s{sa}, {i * 8 * F * 2}')
    cs_, rw = FR, FR + 16
    at(tm('wir', 0) - 1, '\n'.join(f'v_xor_b32 v{rw + n}, {32 * n}, v{vWiR}' for n in range(1, 4)))
    for i in range(8):
        n = tm('wir', i)
        ks, tl = i >> 2, i & 3
        for t in range(2):
            at(n, f'ds_read_b64_tr_b16 {ar(aWI + 4 * i + 2 * t, 2)}, v{rw + tl if tl else vWiR} offset:{4096 * ks + 2048 * t}', 2,
               dep=[T('wid', 4 * ks + 3)], sig=[T('stgA')], lat=0)
        c = vr(cs_ + 4 * tl, 4)
        at(n + 1, f'{M16} {c}, {vr(ONE4, 4)}, {ar(aWI + 4 * i, 4)}, ' + (c if ks else '0'), 1, lat=0)
        at(tm('wis', i), f'buffer_store_dwordx4 {ar(aWI + 4 * i, 4)}, v{vWiS if tl == 3 else L16}, {Q(qS)}, s{SWI[i]} offen sc1', 4, sig=[T('wist')], lat=0)
        assert tm('wis', i) > n
    n = tm('wir', 7) + 3
    at(n - 1, '\n'.join(f'v_mov_b32_dpp v{cs_}, v{cs_ + 4 * g} quad_perm:[0,1,2,3] row_mask:{hex(1 << g)} bank_mask:0xf' for g in range(1, 4)))
    at(n, f'''v_cvt_pk_bf16_f32 v{cs_ + 1}, v{cs_}, v{cs_}
    v_and_b32 v{cs_ + 1}, 0xffff0000, v{cs_ + 1}
    v_sub_f32 v{cs_ + 1}, v{cs_}, v{cs_ + 1}
    v_cvt_pk_bf16_f32 v{cs_}, v{cs_}, v{cs_ + 1}
    buffer_store_dword v{cs_}, v{vWiC}, {Q(qS)}, 0 offen sc1''', sig=[T('wist')], lat=0)
    at(b_arr, m.arrive(vCA2, H_WIN), 4, dep=[T('wist')], lat=0)
    assert b_arr > max(n, tm('wis', 7))
    for i in range(8):
        p = i & 3
        at(tm('sp', i), f'buffer_load_dwordx4 v{(vSp0, vSp1)[p & 1]}, {Q(qSP)}, s{sa} offen lds', sig=[T('spd', i)], lat=0,
           pre=f's_add_u32 m0, s{sRg}, {8192 + 1024 * i}\ns_mov_b32 s{sa}, {(16 * (p & 1) + 4 * (p >> 1)) * 4096 + 128 * (i >> 2)}')
    for i in range(8):
        ks, u = i >> 1, i & 1
        at(tm('spr', i), f'ds_read_b128 {ar(aSP + 4 * i, 4)}, v{(vSpR0, vSpR1)[ks & 1]} offset:{4096 * (ks >> 1) + 2048 * u}', 2,
           dep=[T('spd', 4 * (ks >> 1) + 3)], sig=[T('stgB')], lat=0)
        pre = {0: f's_lshl_b32 s{sb}, s{sT}, 17\ns_lshl_b32 s3, s{sC}, 13\ns_add_u32 s{sb}, s{sb}, s3\ns_add_u32 s{sb}, s{sb}, {WSP}',
               4: f's_add_u32 s{sb}, s{sb}, 4096'}.get(i, '')
        at(tm('sps', i), f'buffer_store_dwordx4 {ar(aSP + 4 * i, 4)}, v{L16}, {Q(qS)}, s{sb} offen offset:{1024 * (i & 3)} sc1', 4,
           sig=[T('ost')], lat=0, pre=pre)
        assert tm('sps', i) > tm('spr', i)
    for i in range(31):
        n, dep = (tm('woB', i), [T('stgA')]) if i < 8 else (tm('woC', i - 8), [T('stgB')]) if i < 16 else (tm('woA', i - 16), [])
        at(n, f'buffer_load_dwordx4 v{vWo}, {Q(qWO)}, s{sa} offen lds', dep=dep, sig=[T('wod')], lat=0,
           pre=f's_add_u32 m0, s{sRg}, {1024 * i}\ns_add_u32 s{sa}, s{sM0}, {16384 * i}')
    assert tm('woB', 0) > tm('wir', 7) and tm('woC', 0) > tm('spr', 7)
    for i in range(4):
        at(b_x + i, f'buffer_load_dwordx4 {vr(XR + 4 * i, 4)}, v{vX}, {Q(qX)}, ' + (f's{sa}' if i & 1 else '0') + f' offen offset:{64 * (i >> 1)}',
           lat=0, pre=f's_movk_i32 s{sa}, 8192' if i & 1 else '')
    n0 = NB - 5
    for i in range(2):
        for q in range(4):
            at(n0 + i + (q + 1) // 2, f'ds_write_b128 v{vXw}, {vr(O_ + 16 * i + 4 * q, 4)} offset:{4096 * i + 1024 * q}', (5, 2)[q & 1],
               sig=[T('xw')], lat=0)
        at(n0 + i + 1, f'ds_write_b32 v{vLw}, v{L_ + 4 * i} offset:{256 * i}', 4, sig=[T('xw')], lat=0)
    at(NB - 1, 's_barrier', 1, dep=[T('xw')], sig=[T('xall')], lat=0)
    for q in range(8):
        at(NB - 1, f'ds_read_b128 {vr(O_ + 4 * q, 4)}, v{vXr} offset:{1024 * q}', (2, 2, 2, 4, 4, 5, 5, 5)[q], dep=[T('xall')], sig=[T('xrd')], lat=0)
    for i in range(2):
        at(NB - 1, f'ds_read_b32 v{L_ + 4 * i}, v{vLr} offset:{256 * i}', 5, dep=[T('xall')], sig=[T('xrd')], lat=0)
    at(NB - 8, f's_add_u32 s{t2}, s{t1}, 65536', 1, pre=f'''s_lshl_b32 s{t1}, s{sR}, 2
    s_add_u32 s{t1}, s{t1}, s{t4}
    s_lshl_b32 s{t1}, s{t1}, 5
    s_lshl_b32 s3, s{sC}, 1
    s_add_u32 s3, s3, s{t3}
    s_add_u32 s{t1}, s{t1}, s3
    s_lshl_b32 s{t1}, s{t1}, 11
    s_add_u32 s{t1}, s{t1}, {OO}''')

    def flush(n, j):
        lst = side.get(n, [])
        while lst and lst[0][0] <= j:
            jj, pre, text, post, kw = lst.pop(0)
            S.lines(pre, at=gap(n - 2, 0))
            S.add(text, at=gap(n, jj), by=gap(n, jj), **kw)
            S.lines(post, by=gap(n + 1, 1))
    for n in side:
        side[n].sort(key=lambda x: x[0])
    for n in range(NB):
        s = SB[n % 3]
        if n == b_poll:
            m.poll_hidden(S, vCP, H_WIN, gap(n, 2), gap(b_chk, 2), T('ok', H_WIN), thr=64)
        if n == 0:
            qk(0, 0)
            qk(0, 1)
            qk(1, 0, ex(s, 0, 8))
            flush(0, 2)
        else:
            if n + 1 < NB:
                qk(n + 1, 0, ex(s, 0, 3))
            else:
                S.add('s_nop 0', main=True, tail=ex(s, 0, 3), gapb=0)
            flush(n, 0)
            pv(n - 1, 1, ex(s, 3, 6), ex(s, 6, 8))
            flush(n, 2)
        if n + 1 < NB:
            qk(n + 1, 1, ex(s, 8, 11))
        else:
            S.add('s_nop 0', main=True, tail=ex(s, 8, 11), gapb=0)
        flush(n, 3)
        pv(n, 0, ex(s, 11, 14), ex(s, 14, 16))
        flush(n, 5)
        if n in o.get('b_st', ()):
            m.stamp(S, f'b{n}')
    pv(NB - 1, 1, None, None)
    m.stamp(S, 'att')
    P.seg(S)
    finish_o(P.lines, merge=True)
    m.stamp(None, 'ost')


def finish_o(emit, merge):
    for i in range(2):
        b, l = O_ + 32 + 16 * i, L_ + 8 + 4 * i
        if merge:
            emit(f'v_add_f32 v{l}, v{l}, v{L_ + 4 * i}')
        emit(f'v_rcp_f32 v{l + 2}, v{l}')
        if merge:
            emit('\n'.join(f'v_pk_add_f32 {vr(b + e, 2)}, {vr(b + e, 2)}, {vr(b - 32 + e, 2)}' for e in range(0, 16, 2)))
        emit('\n'.join(f'v_pk_mul_f32 {vr(b + e, 2)}, {vr(b + e, 2)}, {vr(l + 2, 2)} op_sel_hi:[1,0]' for e in range(0, 16, 2)))
        for h in range(2):
            d = O_ + 16 * i + 4 * h
            emit('\n'.join(f'v_cvt_pk_bf16_f32 v{d + e}, v{b + 8 * h + 2 * e}, v{b + 8 * h + 2 * e + 1}' for e in range(4)))
            emit(f'buffer_store_dwordx4 {vr(d, 4)}, v{vOs}, {Q(qS)}, s{(t1, t2)[i]} offen offset:{512 * h} sc1', sig=[T('ost')])


def check(m):
    k, P, o = m.k, m.P, m.o
    fb, back = k.label('fb'), k.label('fbk')
    t = SB[0]
    b = O_ + 32
    P.raw(f'v_pk_mul_f32 {vr(t, 2)}, {vr(b, 2)}, 0')
    P.lines('\n'.join(f'v_pk_fma_f32 {vr(t, 2)}, {vr(b + e, 2)}, 0, {vr(t, 2)}' for e in range(2, 32, 2)))
    P.raw(f'''v_add_f32 v{t}, v{t}, v{t + 1}
    v_add_f32 v{t + 1}, v{t}, v{L_ + 8}
    v_add_f32 v{t + 1}, v{t + 1}, v{L_ + 12}
    v_min_f32 v{t + 2}, v{L_ + 8}, v{L_ + 12}
    v_cmp_ngt_f32 vcc, {hexf(o['limit'])}, v{t + 1}
    s_mov_b64 {sr(sPC, 2)}, vcc
    v_cmp_nlt_f32 vcc, {hexf(o['lo'])}, v{t + 2}
    s_or_b64 vcc, vcc, {sr(sPC, 2)}
    s_cbranch_vccnz {fb}
    {back}:''')
    out = [f'{fb}:', 's_waitcnt vmcnt(0)']
    e = lambda x, **kw: out.extend(x.split('\n'))
    s, cm, mx, kv = SB[0], SB[1], SB[2], FR
    e(f's_lshl_b32 s{sP}, s{sC}, 1\ns_add_u32 s{sP}, s{sP}, s{t3}\ns_lshl_b32 s{sP}, s{sP}, 18\ns_add_u32 s{sP}, s{sP}, {KV}')
    e(f's_add_u32 s{sPC + 1}, s{sP}, {64 * 4096}')
    for i in (2, 3):
        l1, l2 = k.label('fb'), k.label('fb')
        ld = lambda f: f'buffer_load_dwordx4 {vr(kv + 4 * f, 4)}, v{L16}, {Q(qS)}, s{sPC} offen offset:{1024 * f} sc1'
        qf = lambda f: ar(aQF + 8 * i + 4 * f, 4)
        e(f'v_mov_b32 v{mx}, 0xff800000\ns_mov_b32 s{sPC}, s{sP}\n{l1}:\n{ld(0)}\n{ld(1)}\ns_add_u32 s{sPC}, s{sPC}, 4096\ns_waitcnt vmcnt(0)')
        e(f'{M32} {vr(s, 16)}, {vr(kv, 4)}, {qf(0)}, 0\n{M32} {vr(s, 16)}, {vr(kv + 4, 4)}, {qf(1)}, {vr(s, 16)}')
        for j in range(0, 16, 2):
            e(f'v_max3_f32 v{mx}, v{s + j}, v{s + j + 1}, v{mx}')
        e(f's_cmp_lg_u32 s{sPC}, s{sPC + 1}\ns_cbranch_scc1 {l1}')
        e(f'v_mov_b32 v{mx + 1}, v{mx}\nv_permlane32_swap_b32 v{mx}, v{mx + 1}\nv_max_f32 v{mx}, v{mx}, v{mx + 1}')
        for j in range(16):
            e(f'v_sub_f32 v{cm + j}, 0, v{mx}\nv_mov_b32 v{O_ + 16 * i + j}, 0')
        for j in range(4):
            e(f'v_mov_b32 v{L_ + 4 * i + j}, 0')
        e(f's_mov_b32 s{sPC}, s{sP}\n{l2}:\n{ld(0)}\n{ld(1)}\n{ld(2)}\n{ld(3)}\ns_add_u32 s{sPC}, s{sPC}, 4096\ns_waitcnt vmcnt(0)')
        e(f'{M32} {vr(s, 16)}, {vr(kv, 4)}, {qf(0)}, {vr(cm, 16)}\n{M32} {vr(s, 16)}, {vr(kv + 4, 4)}, {qf(1)}, {vr(s, 16)}')
        for j in range(16):
            e(f'v_exp_f32 v{s + j}, v{s + j}')
        for f in range(2):
            e(f'{S32} {vr(O_ + 16 * i, 16)}, {vr(kv + 8 + 4 * f, 4)}, {vr(s + 8 * f, 8)}, v{vIdx}')
            e(f'{S16} {vr(L_ + 4 * i, 4)}, {ar(aONE, 4)}, {vr(s + 8 * f, 8)}, v{vIdx}')
            e('s_nop 15')
        e(f's_cmp_lg_u32 s{sPC}, s{sPC + 1}\ns_cbranch_scc1 {l2}')
    finish_o(e, merge=False)
    e(f's_waitcnt vmcnt(0)\ns_branch {back}')
    m.slow.append('\n'.join(out))
```

```python
from mega import *
import mega_b as B
import math

KG = 2 * math.sqrt(2 / math.pi) * LOG2E
accC, rbC, vS2, SQ = 224, 176, 184, 188
aZ2, aZ1, K2, ST, GT, NM, K1 = 80, 136, 192, 216, 232, 236, 244
vSw, vSr, vS3, vYs, vBi = 250, 251, 252, 253, 254
SCR = 159744
vWu, HR, rbF, accF, vOut = 192, 216, 136, 148, 180
ND, NE = 17, 16
LB = (L16, L16b, L16c)


def tail_b(m):
    B.check(m)
    m.P.raw(m.arrive(B.vOA, H_O0), dep=[T('ost')])


def stage_dma(add, s, dep=()):
    slot = RING[s % 5]
    ops = []
    kw = dict(dep=list(dep), sig=[T('sd', s)])
    if s < ND + NE:
        if s == ND - 1:
            add(f's_add_u32 m0, s{t5}, {slot}')
            add(f's_sub_u32 s{sb}, s{sb}, s{sRg}')
            add(f's_add_u32 s{sb}, s{sb}, s{t5}')
            return [add(f'buffer_load_dwordx4 v{L16}, {Q(qS)}, s{sb} offen offset:{1024 * i} sc1 lds', **kw) for i in range(4)]
        if s == ND:
            add(f's_add_u32 s{sb}, s{t6}, {Z2 - WIN}')
        for i in range(7):
            if i in (0, 4):
                add(f's_add_u32 m0, s{sRg}, {slot + 1024 * i}')
            ops.append(add(f'buffer_load_dwordx4 v{L16}, {Q(qS)}, s{sb} offen offset:{1024 * (i & 3)} sc1 lds', **kw))
            if i in (3, 6):
                add(f's_add_u32 s{sb}, s{sb}, {4096 if i == 3 else 28672 - 4096}')
    else:
        add(f's_mov_b32 s{sa}, {(s - ND - NE) * 224 * 2048}')
        for i in range(7):
            if i in (0, 4):
                add(f's_add_u32 m0, s{sRg}, {slot + 1024 * i}')
            ops.append(add(f'buffer_load_dwordx4 v{vWu + i}, {Q(qWU)}, s{sa} offen offset:{1024 * (i & 3)} lds', **kw))
    return ops


def frag_loads(add, i0, i1, **kw):
    ops = []
    for i in range(i0, i1):
        ops.append(add(f'buffer_load_dwordx4 {ar(4 * (i % 64), 4)}, v{L16}, {Q(qS)}, s{sP} offen offset:{1024 * (i & 3)} sc1', **kw))
        if i & 3 == 3:
            add(f's_add_u32 s{sP}, s{sP}, 4096')
    return ops


def pre_reads(m, frs):
    for i, f in enumerate(frs):
        for t in f[0](FR + 4 * ((m.nf + i) % NFR)):
            m.P.raw(t, dep=f[2], sig=f[3])


def unpack(add, dst, src):
    for e in range(4):
        add(f'v_lshlrev_b32 v{dst + 2 * e}, 16, v{src + e}')
        add(f'v_and_b32 v{dst + 2 * e + 1}, 0xffff0000, v{src + e}')


def tr_frag(rb, addr, acc, bslot, n, sd, sg):
    def rd(d):
        return [f'ds_read_b64_tr_b16 {vr(d + 2 * t, 2)}, v{rb + n + 4 * ((addr + 2048 * t) >> 16)} offset:{(addr + 2048 * t) & 65535}'
                for t in range(2)]

    def mf(d):
        out = []
        for u in range(2):
            c = vr(acc + (((n >> 1) * 2 + u) * 2 + (n & 1)) * 4, 4)
            out.append(f'{M16} {c}, {vr(d, 4)}, {ar(8 * bslot + 4 * u, 4)}, {c}')
        return out
    return rd, mf, sd, sg


def ring_rd(p, s0):
    a = RING[(s0 + p // 28) % 5] + (p % 28) * 1024
    return lambda d: [f'ds_read_b128 {vr(d, 4)}, v{LB[a >> 16]} offset:{a & 65535}']


def d_frags():
    out = []
    for isz2, tiles in GROUPS:
        for ks in range(33):
            for n in tiles:
                p = len(out)

                def mf(d, isz2=isz2, ks=ks, n=n):
                    r = []
                    for u in range(2):
                        x = ar(8 * ks + 4 * u, 4) if ks < 32 else vr(NM + 4 * u, 4)
                        c = vr((aZ2 if isz2 else aZ1) + (2 * n + u) * 4, 4)
                        r.append(f'{M16} {c}, ' + (f'{x}, {vr(d, 4)}' if isz2 else f'{vr(d, 4)}, {x}') + ', ' + (c if ks else '0'))
                    return r
                out.append((ring_rd(p, 0), mf, [T('sf', p // 28)], [T('sr', p // 28)]))
    return out


def e_frags():
    out = []
    for ks in range(64):
        for n in range(7):
            p = len(out)

            def mf(d, ks=ks, n=n):
                r = []
                for u in range(2):
                    c = vr(aZ2 + (2 * n + u) * 4, 4)
                    r.append(f'{M16} {c}, {vr(d, 4)}, {ar(8 * (ks % 32) + 4 * u, 4)}, ' + (c if ks else vr(NM + 4 * u, 4)))
                return r
            out.append((ring_rd(p, ND), mf, [T('sf', ND + p // 28)], [T('sr', ND + p // 28)]))
    return out


def f_frags():
    out = []
    for ks in range(56):
        s = ND + NE + ks // 7
        for n in range(4):
            out.append(tr_frag(rbF, RING[s % 5] + (ks % 7) * 4096, accF, ks % 32, n, [T('sf', s)], [T('sr', s)]))
    return out


def phase_c(m):
    k, P, o = m.k, m.P, m.o
    ct = dict(lead=16, bar=24, d1=(196, 250), pre=16)
    ct.update(o.get('c_t', {}))
    P.raw('s_barrier', dep=[T('xrd'), T('wod')])
    P.lines(f'''s_add_u32 s3, s{sW}, 124
    s_lshl_b32 m0, s3, 10
    s_lshl_b32 s{sa}, s3, 14
    v_subrev_u32 v{rbC}, s{sRg}, v{B.vWiR}
    s_mul_i32 s{sRg}, s{sW}, 7168''')
    P.raw(f'buffer_load_dwordx4 v{B.vWo}, {Q(qWO)}, s{sa} offen lds', sig=[T('wod2')])
    P.lines(f'''s_lshl_b32 s{t6}, s{sC}, 19
    s_add_u32 s{t6}, s{t6}, s{sRg}
    s_add_u32 s{t6}, s{t6}, {WIN}
    s_mov_b32 s{sb}, s{t6}
    s_lshr_b32 s{t5}, s{sRg}, 1
    s_min_u32 s{t5}, s{t5}, 10240''')
    if o['upto'] >= 'D':
        stage_dma(P.raw, 0)
    B.check(m)
    for i in range(4):
        x = B.XR + 4 * i
        P.lines(f'v_permlane16_swap_b32 v{x}, v{x + 2}\nv_permlane16_swap_b32 v{x + 1}, v{x + 3}')
    P.lines('\n'.join(f'v_xor_b32 v{rbC + n}, {32 * n}, v{rbC}' for n in range(1, 4)))
    P.lines('\n'.join(f'v_add_u32 v{rbC + 4 + n}, 0x10000, v{rbC + n}' for n in range(4)))
    for i in range(4):
        unpack(P.raw, accC + 8 * i, B.XR + 4 * i)
    frs = []
    for ks in range(32):
        for n in range(4):
            frs.append(tr_frag(rbC, ks * 4096, accC, ks, n, [T('cb')] if ks >= ct['bar'] else [], [T('cr1' if ks >= ct['bar'] else 'cr0')]))
    pre_reads(m, frs[:ct['pre']])
    P.lines(f'''v_add_u32 v{L16b}, 0x10000, v{L16}
    v_add_u32 v{L16c}, 0x20000, v{L16}
    s_mov_b32 s{mk1}, 0x22222222
    s_mov_b32 s{mk1 + 1}, 0x22222222
    s_mov_b32 s{mk2}, 0x44444444
    s_mov_b32 s{mk2 + 1}, 0x44444444
    s_mov_b32 s{mk3}, 0x88888888
    s_mov_b32 s{mk3 + 1}, 0x88888888
    v_lshrrev_b32 v{SQ}, 4, v{vL}
    v_bfe_u32 v{SQ + 1}, v{vL}, 2, 2
    v_cmp_eq_u32 vcc, v{SQ}, v{SQ + 1}
    v_and_b32 v{SQ}, 0xf0, v{L16}
    v_cndmask_b32 v{vS2}, 2.0, v{SQ}, vcc
    s_lshl_b32 s{sP}, s{sT}, 16
    s_lshl_b32 s3, s{sC}, 12
    s_add_u32 s{t0}, s{sP}, s3
    s_add_u32 s{t0}, s{t0}, {HH}
    s_add_u32 s{sP}, s{sP}, {OO}
    s_lshl_b32 s{t1}, s{sT}, 12
    s_add_u32 s{t1}, s{t1}, {ST2}
    s_lshl_b32 s3, s{sC}, 8
    s_add_u32 s{t2}, s{t1}, s3''')
    P.raw(m.arrive(B.vOA, H_O0), dep=[T('ost')])
    m.stamp(None, 'oarr')
    m.poll_inline(B.vOP, H_O0, two=True)
    m.stamp(None, 'ohop')
    frag_loads(P.raw, 0, ct['lead'])
    S = Seg('C')
    S.spread(frag_loads(S.add, ct['lead'], 64), 0, 4 * (64 - ct['lead']), 1)
    for p in range(0, 128, 2):
        if p == 4 * ct['bar']:
            S.add('s_barrier', dep=[T('cr0'), T('wod2')], sig=[T('cb')])
            if o['upto'] >= 'D':
                S.spread(stage_dma(S.add, 1, [T('cb')]) + stage_dma(S.add, 2, [T('cb')]), *ct['d1'], 1)
        m.pair(S, frs[p:p + 2], pre=p < ct['pre'])
    m.stamp(S, 'c')
    S.add('s_barrier', dep=[T('cr1'), T('sd', 0)], sig=[T('sf', 0)], by=250)
    for mm in range(2):
        for u in range(2):
            b = accC + (mm * 2 + u) * 8
            S.lines('\n'.join(f'v_cvt_pk_bf16_f32 v{b + e}, v{b + 2 * e}, v{b + 2 * e + 1}' for e in range(4)))
            S.add(f'buffer_store_dwordx4 {vr(b, 4)}, v{L16}, {Q(qS)}, s{t0} offen offset:{2048 * mm + 1024 * u} sc1', sig=[T('hst')])
    P.seg(S)
    for mm in range(2):
        for u in range(2):
            h = vr(accC + (mm * 2 + u) * 8, 4)
            s_, q_ = vr(SQ + 8 * u, 4), vr(SQ + 8 * u + 4, 4)
            P.raw(f'{M16} {s_}, {vr(ONE4, 4)}, {h}, ' + (s_ if mm else '0'))
            P.raw(f'{M16} {q_}, {h}, {h}, ' + (q_ if mm else '0'))
    P.lines(f'''s_lshl_b32 s{sP}, s{sT}, 16
    s_add_u32 s{sP}, s{sP}, {HH}
    s_lshl_b32 s3, s{sW}, 10
    s_add_u32 s3, s3, {SCR}
    v_lshrrev_b32 v{vSr}, 4, v{vL}
    v_lshl_add_u32 v{vSr}, v{vSr}, 4, s3
    v_and_b32 v{vSw}, 15, v{vL}
    v_lshl_add_u32 v{vSw}, v{vSw}, 2, s3''')
    for e, mk in enumerate((mk1, mk2, mk3)):
        for u in range(2):
            d, q_ = SQ + 1 + 2 * u, SQ + 8 * u + 4
            P.raw(f'v_cndmask_b32 v{d}, v{d if e else q_}, v{q_ + 1 + e}, {sr(mk, 2)}')
    P.raw(f'v_mov_b32 v{SQ + 2}, v{SQ + 8}')
    P.raw(f'buffer_store_dwordx4 {vr(SQ, 4)}, v{vS2}, {Q(qS)}, s{t2} offen sc1', sig=[T('hst')])
    m.stamp(None, 'hst')
    if o['upto'] < 'D':
        P.raw(m.arrive(vRC, H_H), dep=[T('hst')])


def stats(add, n, order):
    ops = []
    for a, b in ((0, 4), (8, 12), (0, 8)):
        ops += [add(f'v_add_f32 v{ST + a + e}, v{ST + a + e}, v{ST + b + e}') for e in range(4)]
    for t in f'''v_permlane16_swap_b32 v{ST}, v{ST + 1}
    v_permlane16_swap_b32 v{ST + 2}, v{ST + 3}
    v_add_f32 v{ST}, v{ST}, v{ST + 1}
    v_add_f32 v{ST + 2}, v{ST + 2}, v{ST + 3}
    v_permlane32_swap_b32 v{ST}, v{ST + 2}
    v_add_f32 v{ST}, v{ST}, v{ST + 2}
    v_mul_f32 v{ST + 2}, {hexf(1.0 / n)}, v{ST}
    v_mul_f32 v{ST}, {hexf(1.0 / n)}, v{ST}
    v_permlane16_swap_b32 v{ST}, v{ST + 2}
    v_fma_f32 v{ST + 2}, -v{ST}, v{ST}, v{ST + 2}
    v_max_f32 v{ST + 2}, 0, v{ST + 2}
    v_add_f32 v{ST + 2}, {hexf(1e-5)}, v{ST + 2}
    v_rsq_f32 v{ST + 1}, v{ST + 2}'''.split('\n'):
        ops.append(add(t.strip()))
    return ops


def gelu(add, a, c0, c1, sv, t):
    return [add(f'v_mul_f32 v{t}, v{a}, v{a}'), add(f'v_fma_f32 v{t}, v{t}, v{c1}, v{c0}'), add(f'v_mul_f32 v{t}, v{t}, v{a}'),
            add(f'v_exp_f32 v{t}, v{t}', lat=1), add(f'v_fma_f32 v{t}, v{t}, v{sv}, v{sv}'), add(f'v_rcp_f32 v{t}, v{t}', lat=1),
            add(f'v_mul_f32 v{a}, v{a}, v{t}')]


def gelu4(add, a, u, t):
    sel = lambda n: f'op_sel:[0,{",".join([str(u)] * n)}] op_sel_hi:[1,{",".join([str(u)] * n)}]'
    h = [(vr(a + 2 * i, 2), vr(t + 2 * i, 2)) for i in range(2)]
    for x, y in h:
        add(f'v_pk_mul_f32 {y}, {x}, {x}')
    for x, y in h:
        add(f'v_pk_fma_f32 {y}, {y}, {vr(K1 + 2, 2)}, {vr(K1, 2)} {sel(2)}')
    for x, y in h:
        add(f'v_pk_mul_f32 {y}, {y}, {x}')
    for e in range(4):
        add(f'v_exp_f32 v{t + e}, v{t + e}')
    for x, y in h:
        add(f'v_pk_fma_f32 {y}, {y}, {vr(K1 + 4, 2)}, {vr(K1 + 4, 2)} {sel(2)}')
    for e in range(4):
        add(f'v_rcp_f32 v{t + e}, v{t + e}')
    for x, y in h:
        add(f'v_pk_mul_f32 {x}, {x}, {y}')


def interleave(chains, w):
    out = []
    for i in range(0, len(chains), w):
        grp = chains[i:i + w]
        for j in range(max(len(c) for c in grp)):
            out += [c[j] for c in grp if j < len(c)]
    return out


def phase_de(m):
    k, P, o = m.k, m.P, m.o
    dt = dict(lead=16, pre=16, st2=96, stat=(170, 235), d5=150, dstep=40, ga=500, gb=560, arr3=70, poll3=30, chk3=56, ld3=50, nrm=50, arrz=70,
              pollz=26, sp=((480, 730, 18), (730, 920, 38)), win1=6, win2=8, esp=(28, 660), eg=(30, 500))
    dt.update(o.get('d_t', {}))
    frs = d_frags()
    stage_dma(P.raw, 3)
    stage_dma(P.raw, 4)
    P.lines(f'''v_lshrrev_b32 v{GT}, 5, v{vL}
    v_lshl_add_u32 v{vSw}, v{GT}, 6, v{vSw}
    v_and_b32 v{GT + 1}, 3, v{vL}
    v_cmp_eq_u32 vcc, 0, v{GT + 1}
    v_lshlrev_b32 v{GT + 1}, 2, v{vL}
    v_cndmask_b32 v{vS3}, 2.0, v{GT + 1}, vcc
    v_and_b32 v{vYs}, 0x1f0, v{L16}
    v_lshl_add_u32 v{vYs}, v{GT}, 10, v{vYs}
    s_lshl_b32 s3, s{sT}, 5
    v_add_lshl_u32 v{vBi}, v{vTau}, s3, 1''')
    pre_reads(m, frs[:dt['pre']])
    P.raw(m.arrive(vRC, H_H), dep=[T('hst')])
    m.stamp(None, 'harr')
    m.poll_inline(vRC, H_H)
    m.stamp(None, 'hhop')
    frag_loads(P.raw, 0, dt['lead'])
    S = Seg('D')
    hl = frag_loads(S.add, dt['lead'], 64)
    S.spread(hl, 0, 4 * (64 - dt['lead']), 1)
    S.spread([S.add(f'buffer_load_dwordx4 {vr(ST + 4 * i, 4)}, v{L16}, {Q(qS)}, s{t1} offen offset:{1024 * i} sc1') for i in range(4)],
             dt['st2'], dt['st2'] + 16, 1)
    S.add(f'buffer_load_ushort v{vBi + 1}, v{vBi}, {Q(qB)}, 0 offen offset:8', at=300, by=310)
    S.add(f'buffer_load_ushort v{vBi}, v{vBi}, {Q(qB)}, 0 offen', at=304, by=314)
    ops = stats(S.add, D, None)
    ops += S.lines(f'''v_mul_f32 v{K1}, {hexf(-KG)}, v{ST + 1}
    v_mul_f32 v{K1 + 4}, v{ST + 2}, v{ST + 1}
    v_mul_f32 v{K1 + 2}, v{ST + 1}, v{ST + 1}
    v_mul_f32 v{K1 + 2}, {hexf(0.044715)}, v{K1 + 2}
    v_mul_f32 v{K1 + 2}, v{K1 + 2}, v{K1}
    v_cvt_pk_bf16_f32 v{NM}, -v{ST}, -v{ST}''')
    wr = [S.add(f'ds_write_b32 v{vSw}, v{K1 + 2 * v} offset:{128 * v}') for v in range(3)]
    ops += wr
    for v in range(3):
        for u in range(2):
            ops.append(S.add(f'ds_read_b128 {vr(K2 + 8 * v + 4 * u, 4)}, v{vSr} offset:{128 * v + 64 * u}', after=(wr[v], 0)))
    for a, b in ((NM, NM + 4), (K1, K1 + 1), (K1 + 2, K1 + 3), (K1 + 4, K1 + 5)):
        ops.append(S.add(f'v_mov_b32 v{b}, v{a}', lat=1))
        ops.append(S.add(f'v_permlane32_swap_b32 v{a}, v{b}'))
    ops += [S.add(f'v_mov_b32 v{NM + 4 * u + e}, v{NM + 4 * u}') for u in range(2) for e in range(1, 4)]
    S.spread(ops, *dt['stat'], 4)
    nt = [0]

    def z2_gelu(tiles):
        chains = []
        for n in tiles:
            for u in range(2):
                for i in range(4):
                    a, e = aZ2 + (2 * n + u) * 4 + i, 4 * u + i
                    c = []
                    gelu(lambda x, **kw: c.append((x, kw)), a, K2 + e, K2 + 8 + e, K2 + 16 + e, GT + nt[0] % 4)
                    nt[0] += 1
                    s_, q_ = ST + 4 * i + 2 * u, ST + 4 * i + 2 * u + 1
                    if n == 1:
                        c.append((f'v_add_f32 v{s_}, v{a}, v{a - 8}', {}))
                    elif n:
                        c.append((f'v_add_f32 v{s_}, v{s_}, v{a}', {}))
                    c.append((f'v_fma_f32 v{q_}, v{a}, v{a}, v{q_}' if n else f'v_mul_f32 v{q_}, v{a}, v{a}', {}))
                    chains.append(c)
        return [S.add(x, **kw) for x, kw in interleave(chains, 2)]

    spq = []
    for a, b, n in dt['sp']:
        spq += [int(a + (b - a) * i / n) for i in range(n)]
    nsp = 0
    for p in range(0, 462, 2):
        s = p // 28
        if p % 28 == 0 and s:
            S.add('s_barrier', dep=[T('sd', s), T('sr', s - 1)], sig=[T('sf', s)])
            if s + 4 < ND:
                g0 = max(2 * p - 24, dt['d5'] + dt['dstep'] * (s - 1))
                S.spread(stage_dma(S.add, s + 4, [T('sf', s)]), g0, g0 + (dt['dstep'] if g0 > 2 * p - 24 else 52), 2)
            if s in o.get('d_st', ()):
                m.stamp(S, f'd{s}')
        m.pair(S, frs[p:p + 2], pre=p < dt['pre'])
        if p + 2 == 132:
            S.ramp(z2_gelu([0, 1, 2, 3]), 270, dt['ga'])
        if p + 1 == 231:
            gb = dt['gb']
            S.ramp(z2_gelu([4, 5, 6]), max(dt['ga'], 468), gb)
            ops = []
            for i in range(2):
                for ab, bm in ((0, 0x3), (8, 0xc)):
                    ops += [S.add(f'v_add_f32_dpp v{ST + 4 * i + e}, v{ST + 4 * i + ab + e}, v{ST + 4 * i + ab + e} row_ror:8 row_mask:0xf bank_mask:{hex(bm)}')
                            for e in range(4)]
            for ab, bm, sh in ((0, 0x5, 'row_shl:4'), (4, 0xa, 'row_shr:4')):
                ops += [S.add(f'v_add_f32_dpp v{ST + e}, v{ST + ab + e}, v{ST + ab + e} {sh} row_mask:0xf bank_mask:{hex(bm)}') for e in range(4)]
            for qp in ('[1,0,3,2]', '[2,3,0,1]'):
                ops += [S.add(f'v_add_f32_dpp v{ST + e}, v{ST + e}, v{ST + e} quad_perm:{qp} row_mask:0xf bank_mask:0xf') for e in range(4)]
            S.lines(f's_add_u32 s{t1}, s{t1}, {ST3 - ST2}\ns_add_u32 s{t2}, s{t2}, {ST3 - ST2}', at=400)
            ops.append(S.add(f'buffer_store_dwordx4 {vr(ST, 4)}, v{vS3}, {Q(qS)}, s{t2} offen sc1', sig=[T('st3')], lat=0))
            S.ramp(ops, gb, gb + 8)
            g = gb + 8 + dt['arr3']
            S.add(m.arrive(vRC, H_ST3), dep=[T('st3')], at=g, by=g)
            g += dt['poll3']
            m.poll_hidden(S, vRC, H_ST3, g, g + dt['chk3'], T('ok', H_ST3))
            g += dt['chk3']
            for i in range(4):
                S.add(f'buffer_load_dwordx4 {vr(ST + 4 * i, 4)}, v{L16}, {Q(qS)}, s{t1} offen offset:{1024 * i} sc1', dep=[T('ok', H_ST3)],
                      by=g + 1 + i, lat=dt['ld3'])
            g += dt['ld3']
            ops = stats(S.add, FH, None)
            ops.append(S.add(f'v_mul_f32 v{ST}, -v{ST}, v{ST + 1}'))
            wr = [S.add(f'ds_write_b32 v{vSw}, v{ST + v} offset:{128 * v}') for v in range(2)]
            ops += wr
            for u in range(2):
                for v in range(2):
                    ops.append(S.add(f'ds_read_b128 {vr(K2 + 8 * v + 4 * u, 4)}, v{vSr} offset:{128 * v + 64 * u}', after=(wr[v], 0)))
            S.ramp(ops, g, g + 12)
            S.lines(f'''s_mul_i32 s3, s{sR}, 28672
            s_add_u32 s{t3}, s{t6}, s3
            s_add_u32 s{t3}, s{t3}, {Z2 - WIN}
            s_add_u32 s{t4}, s{t3}, 4096''', at=g - 40)
            ops = []
            for n in range(7):
                b = aZ2 + 8 * n
                ops += [S.add(f'v_fma_f32 v{b + e}, v{b + e}, v{K2 + 8 + e}, v{K2 + e}') for e in range(8)]
                ops += [S.add(f'v_cvt_pk_bf16_f32 v{b + e}, v{b + 2 * e}, v{b + 2 * e + 1}') for e in range(4)]
                ops.append(S.add(f'buffer_store_dwordx4 {vr(b, 4)}, v{L16}, {Q(qS)}, s{(t3, t4)[n >> 2]} offen offset:{1024 * (n & 3)} sc1',
                                 sig=[T('z2st')], lat=0))
            S.ramp(ops, g + 20, g + dt['nrm'])
            g += dt['nrm'] + dt['arrz']
            gz = g
            S.add('s_barrier', dep=[T('z2st')], sig=[T('z2all')], at=g, by=g)
            S.add(m.arrive(vCA, H_Z2), dep=[T('z2all')], by=g)
            print('z2 arrival at gap', g)
            S.lines(f's_lshl_b32 s{sP}, s{sT}, 17\ns_add_u32 s{sP}, s{sP}, {WSP}')
        done = (p + 2 - 231) // 7
        while nsp < min(2 * done, len(spq), 64):
            x = frag_loads(S.add, nsp, nsp + 1)[0]
            x.at, x.by = spq[nsp], spq[nsp] + 2
            nsp += 1
    m.stamp(S, 'd')
    issue, test = m.poll_txt(vCP, H_Z2)
    early = gz + dt['pollz'] < 920
    if early:
        S.add(issue, at=gz + dt['pollz'], by=gz + dt['pollz'] + 2)
    P.seg(S)
    quads = [(n, u) for n in range(7) for u in range(2)]
    nq = [0]

    def win(cnt, fill=()):
        fill = list(fill)
        txt = []
        for n, u in quads[nq[0]:nq[0] + cnt]:
            gelu4(txt.append, aZ1 + (2 * n + u) * 4, u, GT)
        nq[0] += cnt
        step = max(1, len(txt) // max(1, len(fill)))
        for i, t in enumerate(txt):
            if fill and i % step == 0:
                a, kw = fill.pop(0)
                P.raw(a, **kw)
            P.raw(t)
        for a, kw in fill:
            P.raw(a, **kw)
    P.lines(f'v_lshlrev_b32 v{NM}, 16, v{vBi}\nv_lshlrev_b32 v{NM + 4}, 16, v{vBi + 1}')
    P.lines('\n'.join(f'v_mov_b32 v{NM + 4 * u + e}, v{NM + 4 * u}' for u in range(2) for e in range(1, 4)))
    if not early:
        P.raw(issue)
    win(dt['win1'])
    slow, back = k.label('slow'), k.label('back')
    P.raw(f'{test}\ns_cbranch_scc0 {slow}\n{back}:')
    m.slow.append(m.spin(slow, back, issue, test) + f'\ns_branch {back}')
    m.stamp(None, 'zhop')
    fill = []
    rec = lambda t, **kw: fill.append((t, kw))
    stage_dma(P.raw, ND)
    for s in range(ND + 1, ND + dt.get('wst', 3)):
        stage_dma(rec, s)
    win(dt['win2'], fill)
    frs = e_frags()
    P.raw('s_barrier', dep=[T('sd', ND), T('sr', ND - 1)], sig=[T('sf', ND)])
    m.stamp(None, 'e0')
    S = Seg('E')
    late = []
    for s in range(ND + dt.get('wst', 3), ND + 4):
        late += stage_dma(S.add, s)
    late += stage_dma(S.add, ND + 4)
    S.spread(late, 0, 4 * len(late), 2)
    if nsp < 64:
        ops = frag_loads(S.add, nsp, 64)
        S.spread(ops, 4 * len(late), 4 * len(late) + 6 * len(ops), 2)
    chains = []
    for n, u in quads[nq[0]:]:
        for i in range(4):
            c = []
            gelu(lambda x, **kw: c.append((x, kw)), aZ1 + (2 * n + u) * 4 + i, K1 + u, K1 + 2 + u, K1 + 4 + u, GT + nt[0] % 4)
            nt[0] += 1
            chains.append(c)
    S.ramp([S.add(x, **kw) for x, kw in interleave(chains, 2)], *dt['eg'])
    up = o['upto'] >= 'F'
    t, u_ = GT, GT + 1
    ops = S.lines(f'''v_lshrrev_b32 v{vWu}, 4, v{vL}
    v_lshlrev_b32 v{vWu}, 1, v{vWu}
    v_xor_b32 v{vWu}, v{vWu}, v{vL}
    v_and_b32 v{vWu}, 7, v{vWu}
    v_lshlrev_b32 v{vWu}, 4, v{vWu}
    v_lshrrev_b32 v{vWu + 1}, 3, v{vL}
    v_lshl_add_u32 v{vWu}, v{vWu + 1}, 11, v{vWu}
    s_lshl_b32 s3, s{sRg}, 4
    s_lshl_b32 s{sa}, s{sC}, 7
    s_add_u32 s3, s3, s{sa}
    v_add_u32 v{vWu}, s3, v{vWu}''')
    ops += [S.add(f'v_add_u32 v{vWu + i}, {16384 * i - 1024 * (i & 3)}, v{vWu}') for i in range(1, 7)]
    ops.append(S.add(f's_cmp_eq_u32 s{sW}, 1\ns_cselect_b32 s3, 16384, 0'))
    ops.append(S.add(f'v_add_u32 v{vWu + 6}, s3, v{vWu + 6}'))
    ops.append(S.add(f's_cmp_eq_u32 s{sW}, 2\ns_cselect_b32 s3, 16384, 0'))
    ops.append(S.add(f'v_subrev_u32 v{vWu}, s3, v{vWu}'))
    ops += S.lines(f'''s_and_b32 s3, s{sC}, 1
    s_mul_i32 s{t3}, s{sC}, 7
    s_add_u32 s{t3}, s{t3}, s3
    s_lshl_b32 s{t3}, s{t3}, 10
    s_lshl_b32 s{t1}, s{sT}, 17
    s_add_u32 s{t1}, s{t1}, {YY}
    s_add_u32 s{t3}, s{t3}, s{t1}
    s_add_u32 s{t4}, s{t3}, 4096
    s_lshl_b32 s3, s3, 9
    s_lshr_b32 s{t2}, s{sC}, 1
    s_mul_i32 s{t2}, s{t2}, {7 * 2048}
    s_add_u32 s{t2}, s{t2}, s3
    s_add_u32 s{t2}, s{t2}, s{t1}
    s_add_u32 s{t2}, s{t2}, {3 * 2048}''')
    S.spread(ops, 520, 620, 4)
    e0, e1 = dt['esp']
    for p in range(0, 448, 2):
        s = ND + p // 28
        if p % 28 == 0 and p:
            S.add('s_barrier', dep=[T('sd', s), T('sr', s - 1)], sig=[T('sf', s)])
            if s + 4 < ND + NE or up:
                S.spread(stage_dma(S.add, s + 4, [T('sf', s)]), 2 * p - 24, 2 * p + 28, 2)
            if s in o.get('d_st', ()):
                m.stamp(S, f'e{s - ND}')
        m.pair(S, frs[p:p + 2])
        for ks in range(p // 7, (p + 2) // 7):
            if ks < 32:
                for i, x in enumerate(frag_loads(S.add, 64 + 2 * ks, 66 + 2 * ks)):
                    x.at = int(e0 + (e1 - e0) * (2 * ks + i) / 64)
                    x.by = x.at + 2
    m.stamp(S, 'e')
    if up:
        S.spread([S.add(f'buffer_load_dwordx4 {vr(HR + 4 * i, 4)}, v{L16}, {Q(qS)}, s{t0} offen offset:{1024 * i} sc1') for i in range(4)],
                 760, 790, 2)
        S.add('s_barrier', dep=[T('sd', ND + NE), T('sr', ND + NE - 1)], sig=[T('sf', ND + NE)], by=890)
    for mm in range(4):
        for u in range(2):
            tl = (2 * mm, 2 * mm + 1) if mm < 3 else (6,)
            for n in tl:
                b = (2 * n + u) * 4
                S.lines('\n'.join(f'v_pk_mul_f32 {vr(aZ1 + b + e, 2)}, {vr(aZ1 + b + e, 2)}, {vr(aZ2 + b + e, 2)}' for e in (0, 2)))
            d = aZ2 + (4 * mm + u) * 4 if mm < 3 else aZ2 + 48 + 2 * u
            for i, n in enumerate(tl):
                b = aZ1 + (2 * n + u) * 4
                if mm == 3 and u == 0:
                    continue
                S.lines('\n'.join(f'v_cvt_pk_bf16_f32 v{d + 2 * i + e}, v{b + 2 * e}, v{b + 2 * e + 1}' for e in range(2)))
            if mm < 3:
                S.add(f'buffer_store_dwordx4 {vr(d, 4)}, v{L16}, {Q(qS)}, s{(t3, t4)[mm >> 1]} offen offset:{2048 * (mm & 1) + 1024 * u} sc1',
                      sig=[T('yst')])
    d, b = aZ2 + 48, aZ1 + 48
    S.lines('\n'.join(f'v_cvt_pk_bf16_f32 v{d + e}, v{b + 2 * e}, v{b + 2 * e + 1}' for e in range(2)))
    S.lines(f'v_permlane32_swap_b32 v{d}, v{d + 2}\nv_permlane32_swap_b32 v{d + 1}, v{d + 3}')
    S.add(f'buffer_store_dwordx4 {vr(d, 4)}, v{vYs}, {Q(qS)}, s{t2} offen sc1', sig=[T('yst')])
    P.seg(S)
    m.stamp(None, 'yst')
    if not up:
        P.raw(m.arrive(vRC, H_Y), dep=[T('yst')])


def phase_f(m):
    k, P, o = m.k, m.P, m.o
    ft = dict(lead=20, pre=16)
    ft.update(o.get('f_t', {}))
    s0 = ND + NE
    stage_dma(P.raw, s0 + 4)
    t = GT
    P.lines(f'''v_lshrrev_b32 v{t}, 2, v{vL}
    v_lshlrev_b32 v{rbF}, 7, v{t}
    v_bfe_u32 v{t}, v{vL}, 3, 2
    v_lshl_add_u32 v{rbF}, v{t}, 5, v{rbF}
    v_and_b32 v{t}, 3, v{vL}
    v_lshl_add_u32 v{rbF}, v{t}, 3, v{rbF}''')
    P.lines('\n'.join(f'v_xor_b32 v{rbF + n}, {32 * n}, v{rbF}' for n in range(1, 4)))
    P.lines('\n'.join(f'v_add_u32 v{rbF + 4 + n}, 0x10000, v{rbF + n}' for n in range(8)))
    frs = f_frags()
    pre_reads(m, frs[:ft['pre']])
    for i in range(4):
        unpack(P.raw, accF + 8 * i, HR + 4 * i)
    P.lines(f'''v_bfe_u32 v{vOut}, v{vL}, 4, 1
    v_lshlrev_b32 v{vOut}, 5, v{vOut}
    v_lshrrev_b32 v{t}, 5, v{vL}
    v_lshl_add_u32 v{vOut}, v{t}, 4, v{vOut}
    s_lshl_b32 s3, s{sT}, 5
    v_add_lshl_u32 v{t}, v{vTau}, s3, 11
    s_lshl_b32 s3, s{sC}, 7
    v_add3_u32 v{vOut}, v{vOut}, v{t}, s3
    s_mov_b32 s{sP}, s{t1}
    s_movk_i32 s{t2}, 8192''')
    P.raw(m.arrive(vRC, H_Y), dep=[T('yst')])
    m.stamp(None, 'yarr')
    m.poll_inline(vRC, H_Y)
    m.stamp(None, 'yhop')
    frag_loads(P.raw, 0, ft['lead'])
    S = Seg('F')
    nl = ft['lead']
    for p in range(0, 224, 2):
        s = s0 + p // 28
        if p % 28 == 0 and p:
            S.add('s_barrier', dep=[T('sd', s), T('sr', s - 1)], sig=[T('sf', s)])
            if s + 4 < s0 + 8:
                S.spread(stage_dma(S.add, s + 4, [T('sf', s)]), 2 * p - 24, 2 * p + 28, 2)
        while nl < min(112, 64 + 2 * (p // 4), ft['lead'] + p // 2 + 1):
            x = frag_loads(S.add, nl, nl + 1)[0]
            x.at = 4 * (nl - ft['lead'])
            x.by = x.at + 1
            nl += 1
        m.pair(S, frs[p:p + 2], pre=p < ft['pre'])
    assert nl == 112
    m.stamp(S, 'f')
    for mm in range(2):
        for u in range(2):
            b = accF + (mm * 2 + u) * 8
            S.lines('\n'.join(f'v_cvt_pk_bf16_f32 v{b + e}, v{b + 2 * e}, v{b + 2 * e + 1}' for e in range(4)))
            S.lines(f'v_permlane16_swap_b32 v{b}, v{b + 2}\nv_permlane16_swap_b32 v{b + 1}, v{b + 3}')
            S.add(f'buffer_store_dwordx4 {vr(b, 4)}, v{vOut}, {Q(qO)}, ' + (f's{t2}' if u else '0') + f' offen offset:{64 * mm}')
    P.seg(S)
```

```python
import heapq
from asmlib import *

INF = 10 ** 9
CFG = {'ds': 4, 'vm': 8, 'drop': None}


class Op:
    __slots__ = ('ins', 'tail', 'rd', 'wr', 'main', 'cost', 'salu', 'at', 'by', 'lat', 'sig', 'dep', 'extra', 'wslot',
                 'gapb', 'nfree', 'idx', 'gap', 'preds', 'succs', 'npred', 'dl', 'rdy', 'q', 'name', 'after')

    def __init__(self, text, tail=None, main=False, at=None, by=None, lat=None, sig=(), dep=(), extra=(), wslot=False,
                 gapb=8, nfree=1, cost=None, name=None, after=None):
        mk = lambda t: [x.strip() if x.strip().endswith(':') else Ins(x.strip()) for x in t.split('\n') if x.strip()]
        self.ins = mk(text)
        self.tail = mk(tail) if tail else []
        self.rd, self.wr = set(), set()
        c = 0
        self.q = None
        allsalu = True
        for x in self.ins + self.tail:
            if isinstance(x, str):
                continue
            self.rd |= x.src - self.wr
            self.wr |= x.dst
        for x in self.ins:
            if isinstance(x, str):
                continue
            if x.kind == 'vmem':
                c += CFG['vm']
                self.q = 'vm'
            elif x.kind == 'ds':
                c += 8 if x.op.startswith('ds_write') else CFG['ds']
                self.q = 'lg'
            elif x.kind == 'trans':
                c += 8
            elif x.kind == 'mfma':
                c += 16
            else:
                c += 4
            if x.kind not in ('salu', 'branch'):
                allsalu = False
        self.salu = allsalu
        self.cost = c if cost is None else cost
        self.main, self.at, self.by = main, at, by
        if lat is None:
            lat = {'lg': 8, 'vm': 40, None: 0}[self.q]
            if any(not isinstance(x, str) and x.kind == 'mfma' for x in self.ins):
                lat = 4
        self.lat = lat
        self.sig, self.dep = set(sig), set(dep)
        self.extra = set(extra)
        self.wslot, self.gapb, self.nfree, self.name = wslot, gapb, nfree, name
        self.after = after


def regs(kind, b, n):
    return {(kind, b + i) for i in range(n)}


class Seg:
    def __init__(self, name):
        self.name = name
        self.ops = []
        self.nmain = 0
        self.marks = {}

    def add(self, text, **kw):
        o = Op(text, **kw)
        if o.main:
            o.idx = self.nmain
            self.nmain += 1
        self.ops.append(o)
        return o

    def lines(self, text, **kw):
        return [self.add(t, **kw) for t in text.split('\n') if t.strip()]

    @staticmethod
    def spread(ops, g0, g1, slack=0):
        n = len(ops)
        for i, o in enumerate(ops):
            g = g0 + (g1 - g0) * i / max(n, 1)
            o.at = int(g)
            o.by = int(g) + slack

    @staticmethod
    def ramp(ops, g0, g1):
        n = len(ops)
        for i, o in enumerate(ops):
            o.by = int(g0 + (g1 - g0) * (i + 1) / max(n, 1))

    def schedule(self, verbose=1):
        ops = self.ops
        lastw, readers, sigs = {}, {}, {}
        for n, o in enumerate(ops):
            o.preds, o.succs = {}, []
            o.gap = None

            def edge(p, d):
                if p is o:
                    return
                if p.main and p.tail:
                    d = max(d, 1)
                if o.preds.get(p, -1) < d:
                    o.preds[p] = d
            for r in o.rd | o.extra:
                if r in lastw:
                    p = lastw[r]
                    edge(p, 0 if (p.main and o.main) else p.lat)
            for r in o.wr:
                if r in lastw:
                    p = lastw[r]
                    edge(p, 0 if (p.main and o.main) or (p.q and p.q == o.q) else p.lat)
                for p in readers.get(r, ()):
                    edge(p, 0)
            for t in o.dep:
                for p in sigs.get(t, ()):
                    edge(p, p.lat)
            if o.after:
                edge(o.after[0], o.after[1])
            for r in o.rd | o.extra:
                readers.setdefault(r, []).append(o)
            for r in o.wr:
                lastw[r] = o
                readers[r] = []
            for t in o.sig:
                sigs.setdefault(t, []).append(o)
        for o in ops:
            for p, d in o.preds.items():
                p.succs.append((o, d))
        M = self.nmain
        for o in reversed(ops):
            if o.main:
                o.dl = o.idx
                continue
            dl = INF if o.by is None else o.by
            for s, d in o.succs:
                dl = min(dl, (s.dl - 1 - d) if s.main else (s.dl - d))
            o.dl = dl
        order = {id(o): n for n, o in enumerate(ops)}
        mains = [o for o in ops if o.main]
        out = []
        for o in ops:
            o.npred = len(o.preds)
            o.rdy = -1 if o.at is None else o.at
        waiting = []
        ready = []

        def release(o):
            for s, d in o.succs:
                s.npred -= 1
                s.rdy = max(s.rdy, o.gap + d)
                if s.npred == 0 and not s.main:
                    heapq.heappush(waiting, (s.rdy, order[id(s)], s))
        for o in ops:
            if o.npred == 0 and not o.main:
                heapq.heappush(waiting, (o.rdy, order[id(o)], o))
        stats = {'over': 0, 'forced': 0, 'early': 0}
        cur = []

        def place(o, g):
            o.gap = g
            cur.append(o)
            release(o)

        def force(o, g):
            need, st = [], [o]
            seen = set()
            while st:
                x = st.pop()
                for p in x.preds:
                    if p.gap is None and id(p) not in seen:
                        assert not p.main, f'{self.name}: op {x.ins[0].text if not isinstance(x.ins[0], str) else x.ins[0]} forced before main {p.idx} at gap {g}'
                        seen.add(id(p))
                        need.append(p)
                        st.append(p)
            need.sort(key=lambda x: order[id(x)])
            for p in need:
                place(p, g)
            return need
        est = 0
        self.gapcost = []
        for g in range(-1, M):
            cur = []
            budget, free = 0, 0
            if g >= 0:
                m = mains[g]
                m.gap = g
                release(m)
                budget = m.gapb
                free = m.nfree - (1 if g + 1 < M and mains[g + 1].wslot else 0)
            b0 = budget
            front = 0
            while True:
                while waiting and waiting[0][0] <= g:
                    x = heapq.heappop(waiting)[2]
                    if x.gap is None:
                        ready.append(x)
                ready = [x for x in ready if x.gap is None]
                ready.sort(key=lambda x: (x.dl, order[id(x)]))
                pick = None
                for x in ready:
                    c = x.cost
                    usefree = x.salu and free > 0 and not any(p.gap == g and not p.main and cur.index(p) >= front for p in x.preds)
                    if usefree:
                        c -= 4
                    if c <= budget or x.dl <= g or g == M - 1:
                        pick = (x, c, usefree)
                        break
                if pick is None:
                    break
                x, c, usefree = pick
                place(x, g)
                if usefree:
                    cur.pop()
                    cur.insert(front, x)
                    front += 1
                    free -= 1
                budget -= c
            if g + 1 < M:
                nd = force(mains[g + 1], g)
                stats['forced'] += len(nd)
                budget -= sum(x.cost for x in nd)
            else:
                rest = [x for x in ops if x.gap is None]
                for x in rest:
                    place(x, g)
                    budget -= x.cost
            if g >= 0:
                out.append((mains[g], 'head'))
                if budget < 0:
                    stats['over'] += -budget
                self.gapcost.append(b0 - budget)
            for x in cur:
                out.append((x, 'all'))
            for x in self.marks.get(g, ()):
                out.append((Op(x), 'all'))
            if g >= 0 and mains[g].tail:
                out.append((mains[g], 'tail'))
        if verbose:
            print(f'[seg {self.name}] mains={M} ops={len(ops)} over-budget cycles={stats["over"]} forced={stats["forced"]}')
        return out


class Prog:
    def __init__(self):
        self.items = []

    def raw(self, text, **kw):
        o = Op(text, **kw)
        self.items.append((o, 'all'))
        return o

    def lines(self, text, **kw):
        return [self.raw(t, **kw) for t in text.split('\n') if t.strip()]

    def seg(self, s, verbose=1):
        its = s.schedule(verbose)
        if CFG['drop']:
            its = [(o, p) for o, p in its if not (len(o.ins) == 1 and not o.tail and re.search(CFG['drop'], o.ins[0].text))]
        self.items += its

    def emit(self, k, hoist=True):
        q = {'vm': [], 'lg': []}
        out = []
        lastm = None
        cnt_at_m = None
        issued = {'vm': 0, 'lg': 0}
        maxc = {'vm': 62, 'lg': 14}
        nw = nh = 0
        for o, part in self.items:
            ins = o.tail if part == 'tail' else o.ins
            first = True
            for x in ins:
                if isinstance(x, str):
                    out.append(x)
                    lastm = None
                    continue
                if x.op == 's_waitcnt':
                    assert x.text == 's_waitcnt vmcnt(0)', 'explicit wait'
                    q['vm'] = []
                    out.append(x)
                    continue
                need = x.src | x.dst
                if first and part != 'tail':
                    need = need | o.dep | o.extra
                first = False
                myq = 'vm' if x.kind == 'vmem' else 'lg' if x.kind == 'ds' else None
                w = {}
                for name, lst in q.items():
                    nd = need if name != myq else (need - x.dst) | (x.src & x.dst)
                    if 'ALL' + name in o.dep:
                        last = len(lst) - 1
                    else:
                        last = -1
                        for i in range(len(lst) - 1, -1, -1):
                            if lst[i][1] & nd:
                                last = i
                                break
                    if last >= 0:
                        w[name] = lst[last][0]
                if w:
                    done = False
                    nw += 1
                    if hoist and lastm is not None and all(w[n] <= cnt_at_m[n] for n in w):
                        nx = out[lastm + 1] if lastm + 1 < len(out) else None
                        if isinstance(nx, dict):
                            for n in w:
                                nx[n] = min(nx.get(n, 99), maxc[n], cnt_at_m[n] - w[n])
                            done = True
                        elif nx is None or isinstance(nx, str) or nx.kind not in ('salu', 'branch'):
                            out.insert(lastm + 1, {n: min(maxc[n], cnt_at_m[n] - w[n]) for n in w})
                            done = True
                        if done:
                            nh += 1
                            for n in w:
                                lim = max(w[n], cnt_at_m[n] - maxc[n])
                                q[n] = [e for e in q[n] if e[0] > lim]
                    if not done:
                        out.append({n: min(maxc[n], issued[n] - w[n]) for n in w})
                        for n in w:
                            lim = max(w[n], issued[n] - maxc[n])
                            q[n] = [e for e in q[n] if e[0] > lim]
                out.append(x)
                if myq:
                    issued[myq] += 1
                    q[myq].append((issued[myq], x.dst | o.sig))
                if x.kind == 'mfma':
                    lastm = len(out) - 1
                    cnt_at_m = dict(issued)
                if x.kind == 'branch':
                    lastm = None
        for e in out:
            if isinstance(e, dict):
                k('s_waitcnt ' + ' '.join(f'{"vmcnt" if n == "vm" else "lgkmcnt"}({c})' for n, c in e.items()))
            elif isinstance(e, str):
                k(e)
            else:
                k(e.text)
        print(f'[prog] waits={nw} hoisted={nh}')
```

```python
import sys, ast
import mega, rt
path = sys.argv[1]
opt = {}
for a in sys.argv[2:]:
    kk, v = a.split('=', 1)
    try: v = ast.literal_eval(v)
    except Exception: pass
    opt[kk] = v
mega.build(path, **opt)
rt.compile_s(path)
print('compiled ok')
```

```python
import sys
from sched import *
from mcommon import *

M16 = 'v_mfma_f32_16x16x32_bf16'
M16S = 'v_mfma_f32_16x16x16_bf16'
M32 = 'v_mfma_f32_32x32x16_bf16'
S32 = 'v_smfmac_f32_32x32x32_bf16'
S16 = 'v_smfmac_f32_16x16x64_bf16'
NAME = 'sequential_preLN__mha_block__mixer_gmlp__prompt_kernel'
MASK = 0x80000000

qX, qW, qS, qD, qWO, qWI, qSP, qB, qWU, qO = 4, 8, 12, 16, 20, 24, 28, 32, 36, 40
sR, sC, sW, sT, sBud, sa, sb, sl, sM0, sP, sRg, sM, t0, t1, t2, sPo, t3, t4, t5, t6 = range(44, 64)
mk1, mk2, mk3 = 64, 66, 68
sPC = 70
PROF0 = 72
L16, L16b, L16c, vRC, vCA, vCP, vOne, vPT = range(8)
ONE4 = 8
vL, vTau, vT0, vT1 = 12, 13, 14, 15
FR, NFR = 16, 16
H_ST1, H_CS1, H_KV, H_O0, H_O1, H_WIN, H_H, H_ST3, H_Z2, H_Y = range(10)
QX = 131072
RING = [131072, 0, 28672, 57344, 86016]
Q = lambda q: sr(q, 4)
T = lambda *a: ('t',) + a


class Mega:
    def __init__(self, **opt):
        self.o = dict(prof=None, upto='F', stat_after=4, limit=2.0 ** 64, pf=True, kvpre=3, kvd=5, lo=2.0 ** -30)
        self.o.update(opt)
        self.k = Kernel(NAME, 256, 256, 163840)
        self.k.force_vgpr = 512
        self.P = Prog()
        self.slow = []
        self.nf = 0
        self.nstamp = 0
        self.names = []
        self.visits = []

    def stamp_txt(self, name):
        i = self.nstamp
        assert PROF0 + 4 + i <= 101
        self.nstamp += 1
        self.names.append(name)
        ins = 's_memrealtime' if self.o['prof'] == 'rt' else 's_memtime'
        t = f'{ins} {sr(PROF0 + 2 * (i & 1), 2)}'
        if i:
            t += f'\ns_mov_b32 s{PROF0 + 3 + i}, s{PROF0 + 2 * ((i - 1) & 1)}'
        return t

    def stamp(self, S, name, **kw):
        if not self.o['prof'] or name in self.o.get('skip', ('e',)):
            return
        t = self.stamp_txt(name)
        if S is None:
            self.P.raw(t)
        else:
            S.marks.setdefault(S.nmain - 1, []).append(t)

    def spin(self, lab, back, issue, test):
        return (f'{lab}:\n{issue}\ns_waitcnt vmcnt(0)\n{test}\ns_cbranch_scc1 {back}\n'
                f's_sub_u32 s{sBud}, s{sBud}, 1\ns_cmp_gt_i32 s{sBud}, 0\ns_cbranch_scc1 {lab}')

    def poll_txt(self, addr, hop, two=False, thr=16):
        issue = f'v_mov_b32 v{vPT}, 0\nbuffer_atomic_add v{vPT}, v{addr}, {Q(qS)}, 0 offen offset:{hop * 128} sc0 sc1'
        test = f'v_readfirstlane_b32 s{sPo}, v{vPT}\n'
        if two:
            test += f'v_readlane_b32 s3, v{vPT}, 1\ns_min_u32 s{sPo}, s{sPo}, s3\n'
        test += f's_cmp_ge_u32 s{sPo}, {thr}'
        return issue, test

    def poll_hidden(self, S, addr, hop, at, chk, tok, dep=(), thr=16):
        issue, test = self.poll_txt(addr, hop, thr=thr)
        self.check_hidden(S, issue, test, at, chk, tok, dep)

    def check_hidden(self, S, issue, test, at, chk, tok, dep=()):
        slow, back = self.k.label('slow'), self.k.label('back')
        S.add(issue, at=at, by=at + 2, lat=chk - at, dep=dep)
        S.add(f'{test}\ns_cbranch_scc0 {slow}\n{back}:', at=chk, by=chk + 2, sig=[tok])
        self.slow.append(self.spin(slow, back, issue, test) + f'\ns_branch {back}')

    def poll_inline(self, addr, hop, two=False):
        issue, test = self.poll_txt(addr, hop, two)
        lab, back = self.k.label('spin'), self.k.label('ok')
        self.P.raw(self.spin(lab, back, issue, test) + f'\n{back}:')

    def visit(self, upto):
        if not self.o.get('visit', True):
            return
        i = len(self.visits)
        self.visits.append(upto)
        t = ''.join(f's_cmp_eq_u32 s{sW}, {w}\ns_cbranch_scc1 .Lvs{i}_{w}\n' for w in range(3))
        self.P.raw(t + f's_branch .Lvs{i}_3\n' + ''.join(f'.Lvs{i}_{w}:\n' for w in range(4)) + f'.Lvb{i}:')

    def mark(self, lab):
        self.P.raw(f'{lab}:')

    def arrive(self, addr, hop):
        return f'buffer_atomic_add v{vOne}, v{addr}, {Q(qS)}, 0 offen offset:{hop * 128} sc1'

    def pair(self, S, frs, pre=0, **kw):
        ms = []
        for rd, mf, dep, sig in frs:
            d = FR + 4 * (self.nf % NFR)
            self.nf += 1
            if not pre:
                for t in rd(d):
                    S.add(t, dep=dep, sig=sig)
            ms += mf(d)
        ex = set()
        for m in ms:
            ex |= Ins(m).srcAB
        out = []
        for i, m in enumerate(ms):
            out.append(S.add(m, main=True, wslot=(i == 0), extra=(ex if i == 0 else ()), **kw))
        return out

    def phase_a(self):
        k, P, o = self.k, self.P, self.o
        aK, aV, aQ = 80, 112, 144
        rb, xb, xd, wd, csb, csq = 176, 184, 188, 192, 196, 198
        vst, vrs, vcs, vks, vvs, vqw, vfl = 199, 200, 201, 202, 203, 204, 205
        nm, stl, rsv, cs, csa, csf, tmp = 208, 216, 220, 228, 244, 248, 252
        sd = aQ
        k.end = '.Lend'
        k('s_cmp_ge_u32 s2, 256')
        k(f's_cbranch_scc1 {k.end}')
        for q, off in ((qX, A_X), (qW, A_WQKV), (qS, A_WS), (qD, A_DBG), (qWO, A_WO), (qWI, A_WIN), (qSP, A_WSP), (qB, A_BSP),
                       (qWU, A_WOUT), (qO, A_OUT)):
            k(f's_load_dwordx2 {sr(q, 2)}, s[0:1], {off}')
        if o['prof']:
            k(self.stamp_txt('start'))
        k(f'''v_lshrrev_b32 v{vT0}, 6, v0
        v_and_b32 v{vL}, 63, v0
        v_readfirstlane_b32 s{sW}, v{vT0}
        s_and_b32 s{sR}, s2, 3
        s_lshl_b32 s{sR}, s{sR}, 2
        s_bfe_u32 s{sa}, s2, {3 | (2 << 16)}
        s_add_u32 s{sR}, s{sR}, s{sa}
        s_lshl_b32 s{sa}, s{sa}, 9
        s_mul_i32 s{sb}, s{sa}, 3072
        s_bfe_u32 s{sC}, s2, {2 | (1 << 16)}
        s_lshl_b32 s{sC}, s{sC}, 3
        s_lshr_b32 s3, s2, 5
        s_add_u32 s{sC}, s{sC}, s3
        s_lshl_b32 s{sT}, s{sR}, 2
        s_add_u32 s{sT}, s{sT}, s{sW}
        s_lshl_b32 s{sl}, s{sW}, 13
        v_lshrrev_b32 v{vT0}, 3, v{vL}
        v_lshrrev_b32 v{vT1}, 4, v{vL}
        v_xor_b32 v{vT1}, v{vT1}, v{vL}
        v_and_b32 v{vT1}, 7, v{vT1}
        v_and_b32 v{tmp}, 4, v{vT0}
        v_add_u32 v{tmp}, v{tmp}, v{vT0}
        s_lshl_b32 s3, s{sT}, 5
        v_add_u32 v{tmp}, s3, v{tmp}
        v_lshlrev_b32 v{tmp}, 11, v{tmp}
        v_lshl_add_u32 v{xd}, v{vT1}, 4, v{tmp}
        v_xor_b32 v{xd + 1}, 64, v{xd}
        v_add_u32 v{xd + 1}, {16 * 2048 - 1024}, v{xd + 1}
        v_add_u32 v{xd + 2}, {4 * 2048 - 2048}, v{xd}
        v_add_u32 v{xd + 3}, {4 * 2048 - 2048}, v{xd + 1}
        s_lshl_b32 s3, s{sW}, 4
        v_add_u32 v{tmp}, s3, v{vT0}
        v_mul_u32_u24 v{tmp}, 6144, v{tmp}
        v_and_b32 v{vT0}, 2, v{vT0}
        v_xor_b32 v{vT0}, v{vT0}, v{vL}
        v_and_b32 v{vT0}, 7, v{vT0}
        v_lshl_add_u32 v{tmp}, v{vT0}, 4, v{tmp}
        s_lshl_b32 s3, s{sC}, 7
        s_add_u32 s3, s3, 2048
        v_add_u32 v{wd}, s3, v{tmp}
        v_xor_b32 v{wd + 1}, 64, v{wd}
        v_add_u32 v{wd + 1}, {8 * 6144 - 1024}, v{wd + 1}
        s_mov_b32 s{qX + 2}, {S_ * D * 2}
        s_mov_b32 s{qX + 3}, 0x00020000
        s_mov_b32 s{qW + 2}, {D * 3 * D * 2}
        s_mov_b32 s{qW + 3}, 0x00020000
        s_mov_b32 s{qS + 2}, {256 * MB}
        s_mov_b32 s{qS + 3}, 0x00020000
        s_waitcnt lgkmcnt(0)''')
        if o.get('a_st'):
            self.stamp(None, 'arg')

        def kv_dma(i):
            slot = (i % 4) * 32768
            out = [f's_add_u32 m0, s{sl}, {slot}']
            out += [f'buffer_load_dwordx4 v{xd + p}, {Q(qX)}, s{sa} offen offset:{p * 1024} lds' for p in range(4)]
            out += [f's_add_u32 m0, s{sl}, {slot + 4096}']
            out += [f'buffer_load_dwordx4 v{wd + (p & 1)}, {Q(qW)}, s{sb} offen offset:{p * 1024} lds' for p in range(4)]
            out += [f's_add_u32 s{sa}, s{sa}, 128', f's_and_b32 s{sa}, s{sa}, 2047', f's_mul_i32 s{sb}, s{sa}, 3072']
            return out

        def q_dma(b):
            slot = b * 32768
            out = [f's_add_u32 m0, s{sl}, {slot}']
            out += [f'buffer_load_dwordx4 v{xd + p}, {Q(qW)}, s{sb} offen offset:{p * 1024} lds' for p in range(4)]
            out += [f's_add_u32 m0, s{sl}, {slot + 4096}', f's_add_u32 s{sb}, s{sb}, {64 * 6144}']
            out += [f'buffer_load_dwordx4 v{xd + p}, {Q(qW)}, s{sb} offen offset:{p * 1024} lds' for p in range(4)]
            out += [f's_add_u32 s{sa}, s{sa}, 512', f's_and_b32 s{sa}, s{sa}, 2047', f's_mul_i32 s{sb}, s{sa}, 3072']
            return out

        def stat_loads():
            P.lines(f'''s_and_b32 s3, s{sC}, 12
            s_add_u32 s{t0}, s3, s{sC}
            s_lshl_b32 s3, s{sT}, 5
            s_add_u32 s3, s3, s{t0}
            v_lshrrev_b32 v{vT0}, 5, v{vL}
            v_lshl_add_u32 v{tmp}, v{vT0}, 2, s3
            v_and_b32 v{vT1}, 31, v{vL}
            v_lshlrev_b32 v{tmp}, 11, v{tmp}
            v_lshl_add_u32 v{tmp}, v{vT1}, 4, v{tmp}''')
            for i in range(4):
                P.raw(f'buffer_load_dwordx4 {vr(sd + 4 * i, 4)}, v{tmp}, {Q(qX)}, 0 offen offset:{512 * i}')
        for i in range(4):
            if i == o['stat_after']:
                stat_loads()
            for t in kv_dma(i):
                P.raw(t, sig=[T('adma', i)] if 'lds' in t else ())
            if i == 0:
                if o['pf']:
                    lb = k.label('pc')
                    P.raw(f'''s_getpc_b64 {sr(sPC, 2)}
                    {lb}:
                    s_lshr_b32 s3, s2, 3
                    s_lshl_b32 s3, s3, 12
                    v_lshl_add_u32 v{tmp}, v0, 4, s3
                    v_min_u32 v{tmp}, .Lcodeend-{lb}-16, v{tmp}
                    v_mov_b32 v{tmp + 1}, s{sPC + 1}
                    v_add_co_u32 v{tmp}, vcc, s{sPC}, v{tmp}
                    v_addc_co_u32 v{tmp + 1}, vcc, 0, v{tmp + 1}, vcc
                    global_load_dwordx4 {vr(cs, 4)}, {vr(tmp, 2)}, off''')
                P.lines(f'''s_cmp_eq_u32 s2, 0
                s_cselect_b32 s{sM0}, 0, {hex(MASK)}
                v_lshrrev_b32 v{vT0}, 2, v0
                v_and_b32 v{vT1}, 3, v0
                v_lshlrev_b32 v{vT1}, 7, v{vT1}
                v_lshl_add_u32 v{vT0}, v{vT0}, 11, v{vT1}
                v_add_u32 v{vT0}, s{sM0}, v{vT0}
                v_mov_b32 v{vPT}, 0
                v_lshl_add_u32 v{vfl}, v0, 2, s{sM0}''')
                for i3 in range(3):
                    P.raw(f'buffer_store_dword v{vPT}, v{vT0}, {Q(qS)}, 0 offen offset:{CNT + 512 * i3} sc1', sig=[T('zero')])
        if o['stat_after'] >= 4:
            stat_loads()
        for q, sz in ((qD, 4), (qWO, D * D * 2), (qWI, D * F * 2), (qSP, S_ * S_ * 2), (qB, S_ * 2), (qWU, FH * D * 2), (qO, S_ * D * 2)):
            P.lines(f's_mov_b32 s{q + 2}, {sz}\ns_mov_b32 s{q + 3}, 0x00020000')
        a, b, c_, d_ = csf, csf + 1, csf + 2, csf + 3
        P.lines(f'''s_mov_b32 s{sBud}, 20000
        v_lshlrev_b32 v{L16}, 4, v{vL}
        v_mov_b32 v{vOne}, 1
        v_mov_b32 v{ONE4}, {hex(ONES)}
        v_mov_b32 v{ONE4 + 1}, {hex(ONES)}
        v_mov_b32 v{ONE4 + 2}, {hex(ONES)}
        v_mov_b32 v{ONE4 + 3}, {hex(ONES)}
        v_and_b32 v{a}, 15, v{vL}
        v_lshrrev_b32 v{b}, 4, v{vL}
        v_lshrrev_b32 v{c_}, 1, v{a}
        v_xor_b32 v{c_}, v{c_}, v{b}
        v_lshlrev_b32 v{c_}, 4, v{c_}
        v_lshl_add_u32 v{c_}, v{a}, 7, v{c_}
        v_add_u32 v{xb}, s{sl}, v{c_}
        v_xor_b32 v{xb + 1}, 64, v{xb}
        v_add_u32 v{xb + 2}, 0x10000, v{xb}
        v_add_u32 v{xb + 3}, 0x10000, v{xb + 1}
        v_lshrrev_b32 v{c_}, 5, v{vL}
        v_lshlrev_b32 v{c_}, 13, v{c_}
        v_and_b32 v{d_}, 1, v{b}
        v_lshl_add_u32 v{c_}, v{d_}, 10, v{c_}
        v_lshl_add_u32 v{c_}, v{d_}, 6, v{c_}
        v_lshrrev_b32 v{d_}, 2, v{a}
        v_lshl_add_u32 v{c_}, v{d_}, 7, v{c_}
        v_lshrrev_b32 v{d_}, 3, v{a}
        v_lshl_add_u32 v{c_}, v{d_}, 5, v{c_}
        v_and_b32 v{d_}, 3, v{a}
        v_lshl_add_u32 v{rb}, v{d_}, 3, v{c_}
        v_xor_b32 v{rb + 1}, 32, v{rb}
        v_xor_b32 v{rb + 2}, 64, v{rb}
        v_xor_b32 v{rb + 3}, 0x60, v{rb}
        v_add_u32 v{rb + 4}, 0x10000, v{rb}
        v_add_u32 v{rb + 5}, 0x10000, v{rb + 1}
        v_add_u32 v{rb + 6}, 0x10000, v{rb + 2}
        v_add_u32 v{rb + 7}, 0x10000, v{rb + 3}
        v_and_b32 v{vTau}, 12, v{a}
        v_add_u32 v{vTau}, v{vTau}, v{a}''')
        P.lines(f'''s_bfe_u32 s{t1}, s{sR}, {2 | (1 << 16)}
        s_lshl_b32 s3, s{sW}, 1
        s_add_u32 s3, s3, s{t1}
        s_and_b32 s{t2}, s3, 3
        s_lshl_b32 s{t2}, s{t2}, 5
        v_xor_b32 v{csb}, s{t2}, v{rb}
        s_lshr_b32 s3, s3, 2
        s_lshl_b32 s3, s3, 11
        s_lshr_b32 s{t2}, s{sR}, 3
        s_lshl_b32 s{t3}, s{t2}, 14
        s_add_u32 s3, s3, s{t3}
        v_add_u32 v{csb}, s3, v{csb}
        v_add_u32 v{csb + 1}, 0x10000, v{csb}
        s_lshl_b32 s3, s{sW}, 5
        v_xor_b32 v{csq}, s3, v{rb}
        s_lshl_b32 s3, s{t1}, 12
        s_add_u32 s3, s3, s{t3}
        v_add_u32 v{csq}, s3, v{csq}''')
        P.lines(f'''s_lshl_b32 s3, s{sC}, 2
        s_add_u32 s3, s3, s{sW}
        s_lshl_b32 s3, s3, 2
        s_and_b32 s{t3}, s{sR}, 3
        s_add_u32 s3, s3, s{t3}
        s_lshl_b32 s3, s3, 8
        v_add_u32 v{vcs}, s3, v{L16}
        v_mov_b32 v{d_}, {hex(MASK)}
        v_cmp_gt_u32 vcc, 16, v{vL}
        v_cndmask_b32 v{vcs}, v{d_}, v{vcs}, vcc
        s_lshl_b32 s{t1}, s{t1}, 1
        s_add_u32 s{t1}, s{t1}, s{t2}
        s_lshl_b32 s{t1}, s{t1}, 2
        s_add_u32 s{t4}, s{t1}, {CS1}
        s_lshr_b32 s{t5}, s{sR}, 2
        s_lshl_b32 s{t5}, s{t5}, 2
        s_add_u32 s{t5}, s{t5}, {CSQ}''')
        P.lines(f'''s_lshl_b32 s3, s{sT}, 11
        v_mov_b32 v{c_}, s3
        v_cmp_eq_u32 vcc, 0, v{vL}
        v_cndmask_b32 v{vRC}, v{d_}, v{c_}, vcc
        s_lshl_b32 s3, s{sC}, 2
        s_add_u32 s{t1}, s3, s{sW}
        s_lshl_b32 s{t1}, s{t1}, 11
        v_mov_b32 v{c_}, s{t1}
        v_cndmask_b32 v{vCP}, v{d_}, v{c_}, vcc
        v_add_lshl_u32 v{c_}, v{vL}, s3, 11
        s_cmp_eq_u32 s{sW}, 0
        s_cselect_b32 s3, 4, 0
        v_cmp_gt_u32 vcc, s3, v{vL}
        v_cndmask_b32 v{vCA}, v{d_}, v{c_}, vcc''')
        P.lines(f'''s_lshl_b32 s{t6}, s{sT}, 9
        s_add_u32 s{t6}, s{t6}, {ST1}
        s_lshl_b32 s3, s{sC}, 4
        v_lshrrev_b32 v{c_}, 5, v{vL}
        v_lshl_add_u32 v{vst}, v{c_}, 3, s3
        s_lshl_b32 s3, s{t0}, 2
        v_lshl_add_u32 v{vrs}, v{c_}, 4, s3
        v_and_b32 v{c_}, 31, v{vL}
        v_cmp_eq_u32 vcc, 0, v{c_}
        v_cndmask_b32 v{vst}, v{d_}, v{vst}, vcc
        v_cndmask_b32 v{vrs}, v{d_}, v{vrs}, vcc''')
        P.lines(f'''v_lshrrev_b32 v{c_}, 5, v{vL}
        v_and_b32 v{d_}, 1, v{b}
        v_lshl_add_u32 v{vks}, v{c_}, 5, v{vTau}
        v_lshl_add_u32 v{vks}, v{d_}, 2, v{vks}
        v_lshlrev_b32 v{vks}, 4, v{vks}
        v_and_b32 v{vvs}, 8, v{a}
        v_add_u32 v{vvs}, v{vvs}, v{a}
        v_lshl_add_u32 v{vvs}, v{d_}, 5, v{vvs}
        v_lshl_add_u32 v{vvs}, v{c_}, 6, v{vvs}
        v_lshlrev_b32 v{vvs}, 4, v{vvs}
        v_lshl_add_u32 v{vqw}, v{c_}, 5, v{a}
        v_lshl_add_u32 v{vqw}, v{d_}, 6, v{vqw}
        s_lshl_b32 s3, s{sW}, 12
        s_add_u32 s3, s3, {QX}
        v_lshl_add_u32 v{vqw}, v{vqw}, 4, s3''')

        self.visit('.Lwo' if o['upto'] >= 'C' else '.Lend')
        S = Seg('A')
        g_stat, g_flag, g_arr, b_cs, g_poll, g_chk = o.get('a_t', (72, 100, 170, 7, 300, 380))

        def tr(d, base, addr, t):
            a_ = addr + 512 * t
            return f'ds_read_b64_tr_b16 {vr(d + 2 * t, 2)}, v{base + 4 * (a_ >> 16)} offset:{a_ & 65535}'

        def split_store(acc, so, tok):
            ops = S.lines(f'''v_cvt_pk_bf16_f32 v{acc + 1}, v{acc}, v{acc}
            v_and_b32 v{acc + 2}, 0xffff0000, v{acc + 1}
            v_sub_f32 v{acc + 2}, v{acc}, v{acc + 2}
            v_cvt_pk_bf16_f32 v{acc + 1}, v{acc}, v{acc + 2}''')
            ops.append(S.add(f'buffer_store_dword v{acc + 1}, v{vcs}, {Q(qS)}, s{so} offen sc1', sig=[tok]))
            return ops

        for i in range(16):
            slot = (i % 4) * 32768
            dep = [T('adma', i), T('ard', i - 1)]
            if i == 1:
                dep.append(T('zero'))
            if i == b_cs:
                dep.append(T('cs1'))
            S.add('s_barrier', dep=dep, sig=[T('afull', i)])
            if i == 0 or i in o.get('a_st', ()):
                self.stamp(S, f'a{i}')
            if i == 1:
                S.add(f'buffer_store_dword v{vOne}, v{vfl}, {Q(qD)}, 0 offen sc1', dep=[T('afull', 1)], by=34)
            if i == b_cs:
                S.add(self.arrive(vCA, H_CS1), dep=[T('afull', i), T('flag')], by=32 * i + 2)
            if i >= 1:
                j = i + 3
                if j == 16:
                    ops = S.lines(f'''s_lshr_b32 s3, s{sW}, 1
                    s_mul_i32 s3, s3, {96 * 6144}
                    s_sub_u32 s3, s3, 2048
                    v_add_u32 v{xd}, s3, v{wd}
                    v_add_u32 v{xd + 1}, s3, v{wd + 1}
                    v_add_u32 v{xd + 2}, {32 * 6144 - 2048}, v{xd}
                    v_add_u32 v{xd + 3}, {32 * 6144 - 2048}, v{xd + 1}''')
                ops = []
                for t in (kv_dma(j) if j < 16 else q_dma(j - 16)):
                    x = S.add(t, dep=[T('afull', i)] if 'lds' in t else (), sig=[T('adma', j)] if 'lds' in t else ())
                    if 'lds' in t:
                        ops.append(x)
                S.spread(ops, 32 * i - 8, 32 * i + 24, 2)
            if i == 2:
                s_, q_, tt = aQ + 16, aQ + 17, aQ + 18
                ops = []
                for d in range(16):
                    ops.append(S.add(f'v_dot2_f32_bf16 v{s_}, v{sd + d}, v{ONE4}, ' + ('0' if d == 0 else f'v{s_}')))
                    ops.append(S.add(f'v_dot2_f32_bf16 v{q_}, v{sd + d}, v{sd + d}, ' + ('0' if d == 0 else f'v{q_}')))
                for n in (8, 4, 2, 1):
                    for x in (s_, q_):
                        ops.append(S.add(f'v_add_f32_dpp v{x}, v{x}, v{x} row_ror:{n} row_mask:0xf bank_mask:0xf'))
                ops += S.lines(f'''v_mov_b32 v{tt}, v{s_}
                v_mov_b32 v{tt + 1}, v{q_}
                v_permlane16_swap_b32 v{s_}, v{tt}
                v_permlane16_swap_b32 v{q_}, v{tt + 1}
                v_add_f32 v{s_}, v{s_}, v{tt}
                v_add_f32 v{q_}, v{q_}, v{tt + 1}
                v_mul_f32 v{s_}, {hexf(-1.0 / D)}, v{s_}
                v_mul_f32 v{q_}, {hexf(1.0 / D)}, v{q_}
                v_fma_f32 v{q_}, -v{s_}, v{s_}, v{q_}
                v_max_f32 v{q_}, 0, v{q_}
                v_add_f32 v{q_}, {hexf(1e-5)}, v{q_}
                v_rsq_f32 v{q_}, v{q_}
                v_cvt_pk_bf16_f32 v{s_}, v{s_}, v{s_}''')
                ops.append(S.add(f'buffer_store_dwordx2 {vr(s_, 2)}, v{vst}, {Q(qS)}, s{t6} offen sc1', sig=[T('st1')]))
                ops.append(S.add(f'buffer_store_dword v{q_}, v{vrs}, {Q(qS)}, s{t6} offen offset:256 sc1', sig=[T('st1')]))
                S.spread(ops, g_stat, g_stat + 40, 0)
                self.check_hidden(S, f'buffer_load_dword v{vPT}, off, {Q(qD)}, 0 sc1',
                                  f'v_readfirstlane_b32 s{sPo}, v{vPT}\ns_cmp_ge_u32 s{sPo}, 1', g_flag, g_arr - 4, T('flag'))
                S.add(self.arrive(vRC, H_ST1), dep=[T('st1'), T('flag')], at=g_arr, by=g_arr)
            if i == 9:
                self.poll_hidden(S, vRC, H_ST1, g_poll, g_poll + 60, T('ok', H_ST1))
                self.poll_hidden(S, vCP, H_CS1, g_poll + 62, g_poll + 120, T('ok', H_CS1))
                ops = S.lines(f'''v_and_b32 v{tmp}, 0xf0, v{L16}
                v_lshrrev_b32 v{tmp + 1}, 4, v{vL}
                v_lshlrev_b32 v{tmp + 1}, 5, v{tmp + 1}
                s_lshl_b32 s{t1}, s{sC}, 12
                s_add_u32 s{t1}, s{t1}, {CS1}''', at=g_poll)
                S.add(f'buffer_load_dwordx4 {vr(stl, 4)}, v{tmp}, {Q(qS)}, s{t6} offen sc1', dep=[T('ok', H_ST1)], lat=60)
                for u in range(2):
                    S.add(f'buffer_load_dwordx4 {vr(rsv + 4 * u, 4)}, v{tmp + 1}, {Q(qS)}, s{t6} offen offset:{256 + 16 * u} sc1',
                          dep=[T('ok', H_ST1)], lat=60)
                for m in range(4):
                    S.add(f'buffer_load_dwordx4 {vr(cs + 4 * m, 4)}, v{L16}, {Q(qS)}, s{t1} offen offset:{1024 * m} sc1',
                          dep=[T('ok', H_CS1)], lat=60)
                for u in range(2):
                    for e in range(4):
                        S.add(f'v_mov_b32 v{nm + 4 * u + e}, v{stl + 2 * u}')
            if i < 4:
                for t in range(2):
                    a_ = slot + 4096 + 512 * t
                    S.add(f'ds_read_b64_tr_b16 {vr(csf + 2 * t, 2)}, v{csb + (a_ >> 16)} offset:{a_ & 65535}',
                          dep=[T('afull', i)], sig=[T('ard', i)], at=32 * i, by=32 * i + 4)
                S.add(f'{M16} {vr(csa, 4)}, {vr(ONE4, 4)}, {vr(csf, 4)}, ' + ('0' if i == 0 else vr(csa, 4)), by=32 * i + 16)
                if i == 3:
                    S.ramp(split_store(csa, t4, T('cs1')), 32 * i + 20, 32 * i + 30)
            for ks in range(2):
                kk = 2 * i + ks
                for u in range(2):
                    a_ = slot + 2048 * u
                    S.add(f'ds_read_b128 {ar(8 * kk + 4 * u, 4)}, v{xb + ks + 2 * (a_ >> 16)} offset:{a_ & 65535}',
                          dep=[T('afull', i)], sig=[T('ard', i)])
                for n0 in range(0, 8, 2):
                    frs = []
                    for n in (n0, n0 + 1):
                        isv = n >> 2
                        rd = lambda d, n=n, isv=isv: [tr(d, rb + (n & 3), slot + ks * 16384 + 4096 + 2048 * isv, t) for t in range(2)]

                        def mf(d, n=n, isv=isv):
                            out = []
                            for u in range(2):
                                x = ar(8 * kk + 4 * u, 4)
                                if isv:
                                    c = vr(aV + ((n & 3) * 2 + u) * 4, 4)
                                    out.append(f'{M16} {c}, {x}, {vr(d, 4)}, ' + (c if kk else '0'))
                                else:
                                    c = vr(aK + (((n >> 1) * 2 + u) * 2 + (n & 1)) * 4, 4)
                                    out.append(f'{M16} {c}, {vr(d, 4)}, {x}, ' + (c if kk else '0'))
                            return out
                        frs.append((rd, mf, [T('afull', i)], [T('ard', i)]))
                    self.pair(S, frs)
        for n in range(8):
            for u in range(2):
                csr = vr(cs + 2 * n, 2)
                if n >> 2:
                    c = vr(aV + ((n & 3) * 2 + u) * 4, 4)
                    S.add(f'{M16S} {c}, {vr(nm + 4 * u, 2)}, {csr}, {c}', main=True)
                else:
                    c = vr(aK + (((n >> 1) * 2 + u) * 2 + (n & 1)) * 4, 4)
                    S.add(f'{M16S} {c}, {csr}, {vr(nm + 4 * u, 2)}, {c}', main=True)
        self.stamp(S, 'kv')
        g0 = S.nmain
        e_len, g_karr, g_kpoll, g_kchk = o.get('q_t', (24, 110, 160, 196))
        ops = S.lines(f'''s_lshl_b32 s{t1}, s{sC}, 19
        s_lshl_b32 s3, s{sT}, 12
        s_add_u32 s{t1}, s{t1}, s3
        s_add_u32 s{t1}, s{t1}, {KV}
        s_add_u32 s{t2}, s{t1}, {1 << 18}''', at=g0 - 30)
        ops = []
        for hh in range(2):
            for u in range(2):
                b_ = aK + (hh * 2 + u) * 8
                ops += [S.add(f'v_mul_f32 v{b_ + e}, v{b_ + e}, v{stl + 1 + 2 * u}') for e in range(8)]
                ops += [S.add(f'v_cvt_pk_bf16_f32 v{b_ + e}, v{b_ + 2 * e}, v{b_ + 2 * e + 1}') for e in range(4)]
            b_ = aK + hh * 16
            ops += [S.add(f'v_permlane16_swap_b32 v{b_ + e}, v{b_ + 8 + e}') for e in range(4)]
            for f in range(2):
                ops.append(S.add(f'buffer_store_dwordx4 {vr(b_ + 8 * f, 4)}, v{vks}, {Q(qS)}, s{(t1, t2)[hh]} offen offset:{1024 * f} sc1',
                                 sig=[T('kvst')]))
        for n in range(4):
            b_ = aV + n * 8
            ops += [S.add(f'v_mul_f32 v{b_ + e}, v{b_ + e}, v{rsv + e}') for e in range(8)]
            ops += [S.add(f'v_cvt_pk_bf16_f32 v{b_ + e}, v{b_ + 2 * e}, v{b_ + 2 * e + 1}') for e in range(4)]
            ops.append(S.add(f'buffer_store_dwordx4 {vr(b_, 4)}, v{vvs}, {Q(qS)}, s{(t1, t2)[n >> 1]} offen offset:{2048 + 128 * (n & 1)} sc1',
                             sig=[T('kvst')]))
        S.ramp(ops, g0 - 8, g0 + e_len)
        for b in range(4):
            i = 16 + b
            S.add('s_barrier', dep=[T('adma', i), T('ard', i - 1)], sig=[T('afull', i)])
            if i in o.get('a_st', ()):
                self.stamp(S, f'a{i}')
            if b == 0:
                ops = []
                for t in q_dma(3):
                    x = S.add(t, dep=[T('afull', i)] if 'lds' in t else (), sig=[T('adma', 19)] if 'lds' in t else ())
                    if 'lds' in t:
                        ops.append(x)
                S.spread(ops, 32 * i - 8, 32 * i + 8, 2)
                for ks in range(2):
                    for t in range(2):
                        S.add(f'ds_read_b64_tr_b16 {vr(csf + 2 * t, 2)}, v{csq} offset:{2048 * ks + 512 * t}',
                              dep=[T('afull', i)], sig=[T('ard', i)], by=g0 - 20 + 10 * ks)
                    S.add(f'{M16} {vr(csa, 4)}, {vr(ONE4, 4)}, {vr(csf, 4)}, ' + ('0' if ks == 0 else vr(csa, 4)), by=g0 - 12 + 10 * ks)
                S.ramp(split_store(csa, t5, T('kvst')), g0 + 2, g0 + 8)
                S.add('s_barrier', dep=[T('kvst')], sig=[T('kvall')], at=g0 + g_karr, by=g0 + g_karr)
                S.add(self.arrive(vCA, H_KV), dep=[T('kvall')], by=g0 + g_karr)
                self.poll_hidden(S, vCP, H_KV, g0 + g_kpoll, g0 + g_kchk, T('ok', H_KV))
                S.lines(f'''s_lshl_b32 s{t1}, s{sC}, 12
                s_add_u32 s{t1}, s{t1}, {CSQ}
                s_and_b32 s3, s{sW}, 1
                s_lshl_b32 s{sP}, s{sC}, 1
                s_add_u32 s{sP}, s{sP}, s3
                s_lshl_b32 s{sP}, s{sP}, 1
                s_lshr_b32 s3, s{sW}, 1
                s_add_u32 s{sP}, s{sP}, s3
                s_lshl_b32 s{sP}, s{sP}, 17
                s_add_u32 s{sP}, s{sP}, {KV}''', at=g0 + g_kpoll)
                for n in range(4):
                    S.add(f'buffer_load_dwordx4 {vr(cs + 4 * n, 4)}, v{L16}, {Q(qS)}, s{t1} offen offset:{1024 * n} sc1',
                          dep=[T('ok', H_KV)], lat=30, by=g0 + g_kchk + 4 + n)
            for ks in range(8):
                kk = 8 * b + ks
                for n0 in range(0, 4, 2):
                    frs = []
                    for n in (n0, n0 + 1):
                        rd = lambda d, n=n: [tr(d, rb + n, b * 32768 + (ks & 3) * 2048 + (ks >> 2) * 16384, t) for t in range(2)]

                        def mf(d, n=n):
                            out = []
                            for u in range(2):
                                c = vr(aQ + (((n >> 1) * 2 + u) * 2 + (n & 1)) * 4, 4)
                                out.append(f'{M16} {c}, {vr(d, 4)}, {ar(8 * kk + 4 * u, 4)}, ' + (c if kk else '0'))
                            return out
                        frs.append((rd, mf, [T('afull', i)], [T('ard', i)]))
                    self.pair(S, frs)
        ops = []
        for t in range(o['kvpre']):
            for f in range(4):
                ops.append(S.add(f'buffer_load_dwordx4 {ar(16 * t + 4 * f, 4)}, v{L16}, {Q(qS)}, s{sP} offen offset:{1024 * f} sc1',
                                 dep=[T('ok', H_KV)]))
            S.add(f's_add_u32 s{sP}, s{sP}, 4096')
        S.spread(ops, g0 + g_kchk + 8, g0 + 262, 1)
        S.lines(f'''v_mul_f32 v{stl + 1}, {hexf(32 ** -0.5 * LOG2E)}, v{stl + 1}
        v_mul_f32 v{stl + 3}, {hexf(32 ** -0.5 * LOG2E)}, v{stl + 3}''', by=g0 + 200)
        for n in range(4):
            for u in range(2):
                c = vr(aQ + (((n >> 1) * 2 + u) * 2 + (n & 1)) * 4, 4)
                S.add(f'{M16} {c}, {vr(cs + 4 * n, 4)}, {vr(nm + 4 * u, 4)}, {c}', main=True)
        self.stamp(S, 'q')
        if o['upto'] >= 'B':
            import mega_b
            mega_b.setup(self, S, g0, xb)
        P.seg(S)
        for hh in range(2):
            for u in range(2):
                b_ = aQ + (hh * 2 + u) * 8
                P.lines('\n'.join(f'v_mul_f32 v{b_ + e}, v{b_ + e}, v{stl + 1 + 2 * u}' for e in range(8)))
                P.lines('\n'.join(f'v_cvt_pk_bf16_f32 v{b_ + e}, v{b_ + 2 * e}, v{b_ + 2 * e + 1}' for e in range(4)))
                P.raw(f'ds_write_b128 v{vqw}, {vr(b_, 4)} offset:{hh * 2048 + u * 256}', sig=[T('qw')])

    def finish(self):
        k, P, o = self.k, self.P, self.o
        P.emit(k)
        if o['upto'] < 'F':
            k('s_waitcnt vmcnt(0) lgkmcnt(0)')
        if o['prof']:
            k('s_waitcnt vmcnt(0) lgkmcnt(0)')
            k(self.stamp_txt('end'))
            k(f's_lshl_b32 s3, s2, 2\ns_add_u32 s3, s3, s{sW}\ns_lshl_b32 s3, s3, 7\ns_add_u32 s3, s3, {TJ}')
            k('s_waitcnt lgkmcnt(0)')
            k('v_mov_b32 v0, 0')
            for i in range(self.nstamp):
                k(f'v_writelane_b32 v0, s{PROF0 + 4 + i if i < self.nstamp - 1 else PROF0 + 2 * (i & 1)}, {i}')
            k(f's_getreg_b32 s{t0}, hwreg(HW_REG_XCC_ID)')
            k(f'v_writelane_b32 v0, s{t0}, 30')
            k(f'v_writelane_b32 v0, s{sBud}, 31')
            k(f'v_lshlrev_b32 v1, 2, v{vL}')
            k('s_mov_b32 exec_hi, 0')
            k(f'buffer_store_dword v0, v1, {Q(qS)}, s3 offen')
        k('.Lend:')
        k('s_endpgm')
        for t in self.slow:
            k(t)
        k('.Lcodeend:')
        k('s_endpgm')


def page_stubs(txt, visits):
    import subprocess, tempfile, os
    d = tempfile.mkdtemp()
    open(d + '/a.s', 'w').write(txt)
    subprocess.run(['clang', '-x', 'assembler', '-target', 'amdgcn-amd-amdhsa', '-mcpu=gfx950', '-c', d + '/a.s', '-o', d + '/a.o'], check=True)
    dis = subprocess.run(['llvm-objdump', '-d', d + '/a.o'], capture_output=True, text=True).stdout
    adr = [int(x, 16) for x in re.findall(r'// ([0-9A-F]{12}):', dis)]
    lines = txt.split('\n')
    i0 = lines.index(NAME + ':')
    i1 = lines.index('.section .rodata,"a"')
    ins = [i for i in range(i0, i1) if lines[i].startswith(' ')]
    assert len(ins) == len(adr) and adr[0] == 0, (len(ins), len(adr))
    pos = {ln[:-1]: i for i, ln in enumerate(lines) if ln.endswith(':')}
    n = next(j for j in range(len(ins)) if ins[j] > pos['.Lvb0'])
    print('prologue bytes', adr[n])
    lines[ins[n - 1]] += '\n.p2align 12'
    stubs = []
    shift, page = -adr[n], 1
    end = pos['.Lend']
    while True:
        while n < len(ins) and adr[n] + shift + 4 < 4096 * page:
            n += 1
        if n >= len(ins) or ins[n] > end:
            break
        cand = [j for j in range(n, min(n + 16, len(ins))) if adr[j] + shift + 8 <= 4096 * page + 64]
        best = next((j for j in cand if lines[ins[j - 1]].startswith((' v_mfma', ' v_smfmac'))), cand[0])
        stubs.append(ins[best - 1])
        shift += 8
        page += 1
    add = {}
    done = 0
    for v, upto in enumerate(visits):
        mine = [x for x in range(len(stubs)) if max(pos[f'.Lvb{v}'], done) < stubs[x] < pos[upto]]
        done = pos[upto]
        print(f'visit {v}: pages', [x + 1 for x in mine])
        for w in range(4):
            ch = mine[w::4]
            if ch:
                lines[pos[f'.Lvs{v}_{w}']] = None
            for a, x in enumerate(ch):
                nxt = f'.Lst{ch[a + 1]}' if a + 1 < len(ch) else f'.Lvb{v}'
                add[stubs[x]] = f' s_branch .Lsk{x}\n' + (f'.Lst{x}:' if a else f'.Lvs{v}_{w}:') + f'\n s_branch {nxt}\n.Lsk{x}:'
    out = []
    for i, ln in enumerate(lines):
        if ln is not None:
            out.append(ln)
        if i in add:
            out.append(add[i])
        elif i in stubs:
            out.append(' s_nop 0\n s_nop 0')
    return '\n'.join(out)


def build(path, **opt):
    import mega_b, mega_c
    for kk in list(opt):
        if kk in CFG:
            CFG[kk] = opt.pop(kk)
    m = Mega(**opt)
    m.phase_a()
    up = m.o['upto']
    if up >= 'B':
        mega_b.phase_b(m)
    if up == 'B':
        mega_c.tail_b(m)
    if up >= 'C':
        mega_c.phase_c(m)
    if up >= 'D':
        mega_c.phase_de(m)
    if up >= 'F':
        mega_c.phase_f(m)
    m.finish()
    txt = build_file([m.k], verbose=opt.get('verbose', 1))
    if m.visits:
        txt = page_stubs(txt, m.visits)
    if m.o['prof']:
        txt = txt.replace('.text', '; stamps: ' + ' '.join(m.names) + '\n.text', 1)
    open(path, 'w').write(txt)
    print(path, len(txt), 'bytes')
    return m
```

```python
from mega import *
import mega_b as B
import math

KG = 2 * math.sqrt(2 / math.pi) * LOG2E
accC, rbC, vS2, SQ = 224, 176, 184, 188
aZ2, aZ1, K2, ST, GT, NM, K1 = 80, 136, 192, 216, 232, 236, 244
vSw, vSr, vS3, vYs, vBi = 250, 251, 252, 253, 254
SCR = 159744
vWu, HR, rbF, accF, vOut = 192, 216, 136, 148, 180
ND, NE = 17, 16
LB = (L16, L16b, L16c)


def tail_b(m):
    B.check(m)
    m.P.raw(m.arrive(B.vOA, H_O0), dep=[T('ost')])


def stage_dma(add, s, dep=()):
    slot = RING[s % 5]
    ops = []
    kw = dict(dep=list(dep), sig=[T('sd', s)])
    if s < ND + NE:
        if s == ND - 1:
            add(f's_add_u32 m0, s{t5}, {slot}')
            add(f's_sub_u32 s{sb}, s{sb}, s{sRg}')
            add(f's_add_u32 s{sb}, s{sb}, s{t5}')
            return [add(f'buffer_load_dwordx4 v{L16}, {Q(qS)}, s{sb} offen offset:{1024 * i} sc1 lds', **kw) for i in range(4)]
        if s == ND:
            add(f's_add_u32 s{sb}, s{t6}, {Z2 - WIN}')
        for i in range(7):
            if i in (0, 4):
                add(f's_add_u32 m0, s{sRg}, {slot + 1024 * i}')
            ops.append(add(f'buffer_load_dwordx4 v{L16}, {Q(qS)}, s{sb} offen offset:{1024 * (i & 3)} sc1 lds', **kw))
            if i in (3, 6):
                add(f's_add_u32 s{sb}, s{sb}, {4096 if i == 3 else 28672 - 4096}')
    else:
        add(f's_mov_b32 s{sa}, {(s - ND - NE) * 224 * 2048}')
        for i in range(7):
            if i in (0, 4):
                add(f's_add_u32 m0, s{sRg}, {slot + 1024 * i}')
            ops.append(add(f'buffer_load_dwordx4 v{vWu + i}, {Q(qWU)}, s{sa} offen offset:{1024 * (i & 3)} lds', **kw))
    return ops


def frag_loads(add, i0, i1, **kw):
    ops = []
    for i in range(i0, i1):
        ops.append(add(f'buffer_load_dwordx4 {ar(4 * (i % 64), 4)}, v{L16}, {Q(qS)}, s{sP} offen offset:{1024 * (i & 3)} sc1', **kw))
        if i & 3 == 3:
            add(f's_add_u32 s{sP}, s{sP}, 4096')
    return ops


def pre_reads(m, frs):
    for i, f in enumerate(frs):
        for t in f[0](FR + 4 * ((m.nf + i) % NFR)):
            m.P.raw(t, dep=f[2], sig=f[3])


def unpack(add, dst, src):
    for e in range(4):
        add(f'v_lshlrev_b32 v{dst + 2 * e}, 16, v{src + e}')
        add(f'v_and_b32 v{dst + 2 * e + 1}, 0xffff0000, v{src + e}')


def tr_frag(rb, addr, acc, bslot, n, sd, sg):
    def rd(d):
        return [f'ds_read_b64_tr_b16 {vr(d + 2 * t, 2)}, v{rb + n + 4 * ((addr + 2048 * t) >> 16)} offset:{(addr + 2048 * t) & 65535}'
                for t in range(2)]

    def mf(d):
        out = []
        for u in range(2):
            c = vr(acc + (((n >> 1) * 2 + u) * 2 + (n & 1)) * 4, 4)
            out.append(f'{M16} {c}, {vr(d, 4)}, {ar(8 * bslot + 4 * u, 4)}, {c}')
        return out
    return rd, mf, sd, sg


def ring_rd(p, s0):
    a = RING[(s0 + p // 28) % 5] + (p % 28) * 1024
    return lambda d: [f'ds_read_b128 {vr(d, 4)}, v{LB[a >> 16]} offset:{a & 65535}']


def d_frags():
    out = []
    for isz2, tiles in GROUPS:
        for ks in range(33):
            for n in tiles:
                p = len(out)

                def mf(d, isz2=isz2, ks=ks, n=n):
                    r = []
                    for u in range(2):
                        x = ar(8 * ks + 4 * u, 4) if ks < 32 else vr(NM + 4 * u, 4)
                        c = vr((aZ2 if isz2 else aZ1) + (2 * n + u) * 4, 4)
                        r.append(f'{M16} {c}, ' + (f'{x}, {vr(d, 4)}' if isz2 else f'{vr(d, 4)}, {x}') + ', ' + (c if ks else '0'))
                    return r
                out.append((ring_rd(p, 0), mf, [T('sf', p // 28)], [T('sr', p // 28)]))
    return out


def e_frags():
    out = []
    for ks in range(64):
        for n in range(7):
            p = len(out)

            def mf(d, ks=ks, n=n):
                r = []
                for u in range(2):
                    c = vr(aZ2 + (2 * n + u) * 4, 4)
                    r.append(f'{M16} {c}, {vr(d, 4)}, {ar(8 * (ks % 32) + 4 * u, 4)}, ' + (c if ks else vr(NM + 4 * u, 4)))
                return r
            out.append((ring_rd(p, ND), mf, [T('sf', ND + p // 28)], [T('sr', ND + p // 28)]))
    return out


def f_frags():
    out = []
    for ks in range(56):
        s = ND + NE + ks // 7
        for n in range(4):
            out.append(tr_frag(rbF, RING[s % 5] + (ks % 7) * 4096, accF, ks % 32, n, [T('sf', s)], [T('sr', s)]))
    return out


def phase_c(m):
    k, P, o = m.k, m.P, m.o
    ct = dict(lead=16, bar=24, d1=(196, 250), pre=16)
    ct.update(o.get('c_t', {}))
    P.raw('s_barrier', dep=[T('xrd'), T('wod')])
    P.lines(f'''s_add_u32 s3, s{sW}, 124
    s_lshl_b32 m0, s3, 10
    s_lshl_b32 s{sa}, s3, 14
    v_subrev_u32 v{rbC}, s{sRg}, v{B.vWiR}
    s_mul_i32 s{sRg}, s{sW}, 7168''')
    P.raw(f'buffer_load_dwordx4 v{B.vWo}, {Q(qWO)}, s{sa} offen lds', sig=[T('wod2')])
    P.lines(f'''s_lshl_b32 s{t6}, s{sC}, 19
    s_add_u32 s{t6}, s{t6}, s{sRg}
    s_add_u32 s{t6}, s{t6}, {WIN}
    s_mov_b32 s{sb}, s{t6}
    s_lshr_b32 s{t5}, s{sRg}, 1
    s_min_u32 s{t5}, s{t5}, 10240''')
    if o['upto'] >= 'D':
        stage_dma(P.raw, 0)
    B.check(m)
    for i in range(4):
        x = B.XR + 4 * i
        P.lines(f'v_permlane16_swap_b32 v{x}, v{x + 2}\nv_permlane16_swap_b32 v{x + 1}, v{x + 3}')
    P.lines('\n'.join(f'v_xor_b32 v{rbC + n}, {32 * n}, v{rbC}' for n in range(1, 4)))
    P.lines('\n'.join(f'v_add_u32 v{rbC + 4 + n}, 0x10000, v{rbC + n}' for n in range(4)))
    for i in range(4):
        unpack(P.raw, accC + 8 * i, B.XR + 4 * i)
    frs = []
    for ks in range(32):
        for n in range(4):
            frs.append(tr_frag(rbC, ks * 4096, accC, ks, n, [T('cb')] if ks >= ct['bar'] else [], [T('cr1' if ks >= ct['bar'] else 'cr0')]))
    pre_reads(m, frs[:ct['pre']])
    P.lines(f'''v_add_u32 v{L16b}, 0x10000, v{L16}
    v_add_u32 v{L16c}, 0x20000, v{L16}
    s_mov_b32 s{mk1}, 0x22222222
    s_mov_b32 s{mk1 + 1}, 0x22222222
    s_mov_b32 s{mk2}, 0x44444444
    s_mov_b32 s{mk2 + 1}, 0x44444444
    s_mov_b32 s{mk3}, 0x88888888
    s_mov_b32 s{mk3 + 1}, 0x88888888
    v_lshrrev_b32 v{SQ}, 4, v{vL}
    v_bfe_u32 v{SQ + 1}, v{vL}, 2, 2
    v_cmp_eq_u32 vcc, v{SQ}, v{SQ + 1}
    v_and_b32 v{SQ}, 0xf0, v{L16}
    v_cndmask_b32 v{vS2}, 2.0, v{SQ}, vcc
    s_lshl_b32 s{sP}, s{sT}, 16
    s_lshl_b32 s3, s{sC}, 12
    s_add_u32 s{t0}, s{sP}, s3
    s_add_u32 s{t0}, s{t0}, {HH}
    s_add_u32 s{sP}, s{sP}, {OO}
    s_lshl_b32 s{t1}, s{sT}, 12
    s_add_u32 s{t1}, s{t1}, {ST2}
    s_lshl_b32 s3, s{sC}, 8
    s_add_u32 s{t2}, s{t1}, s3''')
    m.mark('.Lwo')
    m.visit('.Lwz' if o['upto'] >= 'D' else '.Lend')
    P.raw(m.arrive(B.vOA, H_O0), dep=[T('ost')])
    m.stamp(None, 'oarr')
    m.poll_inline(B.vOP, H_O0, two=True)
    m.stamp(None, 'ohop')
    frag_loads(P.raw, 0, ct['lead'])
    S = Seg('C')
    S.spread(frag_loads(S.add, ct['lead'], 64), 0, 4 * (64 - ct['lead']), 1)
    for p in range(0, 128, 2):
        if p == 4 * ct['bar']:
            S.add('s_barrier', dep=[T('cr0'), T('wod2')], sig=[T('cb')])
            if o['upto'] >= 'D':
                S.spread(stage_dma(S.add, 1, [T('cb')]) + stage_dma(S.add, 2, [T('cb')]), *ct['d1'], 1)
        m.pair(S, frs[p:p + 2], pre=p < ct['pre'])
    m.stamp(S, 'c')
    S.add('s_barrier', dep=[T('cr1'), T('sd', 0)], sig=[T('sf', 0)], by=250)
    for mm in range(2):
        for u in range(2):
            b = accC + (mm * 2 + u) * 8
            S.lines('\n'.join(f'v_cvt_pk_bf16_f32 v{b + e}, v{b + 2 * e}, v{b + 2 * e + 1}' for e in range(4)))
            S.add(f'buffer_store_dwordx4 {vr(b, 4)}, v{L16}, {Q(qS)}, s{t0} offen offset:{2048 * mm + 1024 * u} sc1', sig=[T('hst')])
    P.seg(S)
    for mm in range(2):
        for u in range(2):
            h = vr(accC + (mm * 2 + u) * 8, 4)
            s_, q_ = vr(SQ + 8 * u, 4), vr(SQ + 8 * u + 4, 4)
            P.raw(f'{M16} {s_}, {vr(ONE4, 4)}, {h}, ' + (s_ if mm else '0'))
            P.raw(f'{M16} {q_}, {h}, {h}, ' + (q_ if mm else '0'))
    P.lines(f'''s_lshl_b32 s{sP}, s{sT}, 16
    s_add_u32 s{sP}, s{sP}, {HH}
    s_lshl_b32 s3, s{sW}, 10
    s_add_u32 s3, s3, {SCR}
    v_lshrrev_b32 v{vSr}, 4, v{vL}
    v_lshl_add_u32 v{vSr}, v{vSr}, 4, s3
    v_and_b32 v{vSw}, 15, v{vL}
    v_lshl_add_u32 v{vSw}, v{vSw}, 2, s3''')
    for e, mk in enumerate((mk1, mk2, mk3)):
        for u in range(2):
            d, q_ = SQ + 1 + 2 * u, SQ + 8 * u + 4
            P.raw(f'v_cndmask_b32 v{d}, v{d if e else q_}, v{q_ + 1 + e}, {sr(mk, 2)}')
    P.raw(f'v_mov_b32 v{SQ + 2}, v{SQ + 8}')
    P.raw(f'buffer_store_dwordx4 {vr(SQ, 4)}, v{vS2}, {Q(qS)}, s{t2} offen sc1', sig=[T('hst')])
    m.stamp(None, 'hst')
    if o['upto'] < 'D':
        P.raw(m.arrive(vRC, H_H), dep=[T('hst')])


def stats(add, n, order):
    ops = []
    for a, b in ((0, 4), (8, 12), (0, 8)):
        ops += [add(f'v_add_f32 v{ST + a + e}, v{ST + a + e}, v{ST + b + e}') for e in range(4)]
    for t in f'''v_permlane16_swap_b32 v{ST}, v{ST + 1}
    v_permlane16_swap_b32 v{ST + 2}, v{ST + 3}
    v_add_f32 v{ST}, v{ST}, v{ST + 1}
    v_add_f32 v{ST + 2}, v{ST + 2}, v{ST + 3}
    v_permlane32_swap_b32 v{ST}, v{ST + 2}
    v_add_f32 v{ST}, v{ST}, v{ST + 2}
    v_mul_f32 v{ST + 2}, {hexf(1.0 / n)}, v{ST}
    v_mul_f32 v{ST}, {hexf(1.0 / n)}, v{ST}
    v_permlane16_swap_b32 v{ST}, v{ST + 2}
    v_fma_f32 v{ST + 2}, -v{ST}, v{ST}, v{ST + 2}
    v_max_f32 v{ST + 2}, 0, v{ST + 2}
    v_add_f32 v{ST + 2}, {hexf(1e-5)}, v{ST + 2}
    v_rsq_f32 v{ST + 1}, v{ST + 2}'''.split('\n'):
        ops.append(add(t.strip()))
    return ops


def gelu(add, a, c0, c1, sv, t):
    return [add(f'v_mul_f32 v{t}, v{a}, v{a}'), add(f'v_fma_f32 v{t}, v{t}, v{c1}, v{c0}'), add(f'v_mul_f32 v{t}, v{t}, v{a}'),
            add(f'v_exp_f32 v{t}, v{t}', lat=1), add(f'v_fma_f32 v{t}, v{t}, v{sv}, v{sv}'), add(f'v_rcp_f32 v{t}, v{t}', lat=1),
            add(f'v_mul_f32 v{a}, v{a}, v{t}')]


def gelu4(add, a, u, t):
    sel = lambda n: f'op_sel:[0,{",".join([str(u)] * n)}] op_sel_hi:[1,{",".join([str(u)] * n)}]'
    h = [(vr(a + 2 * i, 2), vr(t + 2 * i, 2)) for i in range(2)]
    for x, y in h:
        add(f'v_pk_mul_f32 {y}, {x}, {x}')
    for x, y in h:
        add(f'v_pk_fma_f32 {y}, {y}, {vr(K1 + 2, 2)}, {vr(K1, 2)} {sel(2)}')
    for x, y in h:
        add(f'v_pk_mul_f32 {y}, {y}, {x}')
    for e in range(4):
        add(f'v_exp_f32 v{t + e}, v{t + e}')
    for x, y in h:
        add(f'v_pk_fma_f32 {y}, {y}, {vr(K1 + 4, 2)}, {vr(K1 + 4, 2)} {sel(2)}')
    for e in range(4):
        add(f'v_rcp_f32 v{t + e}, v{t + e}')
    for x, y in h:
        add(f'v_pk_mul_f32 {x}, {x}, {y}')


def interleave(chains, w):
    out = []
    for i in range(0, len(chains), w):
        grp = chains[i:i + w]
        for j in range(max(len(c) for c in grp)):
            out += [c[j] for c in grp if j < len(c)]
    return out


def phase_de(m):
    k, P, o = m.k, m.P, m.o
    dt = dict(lead=16, pre=16, st2=96, stat=(170, 235), d5=150, dstep=40, ga=500, gb=560, arr3=70, poll3=30, chk3=56, ld3=50, nrm=50, arrz=70,
              pollz=26, sp=((480, 730, 18), (730, 920, 38)), win1=6, win2=8, esp=(28, 660), eg=(30, 500))
    dt.update(o.get('d_t', {}))
    frs = d_frags()
    stage_dma(P.raw, 3)
    stage_dma(P.raw, 4)
    P.lines(f'''v_lshrrev_b32 v{GT}, 5, v{vL}
    v_lshl_add_u32 v{vSw}, v{GT}, 6, v{vSw}
    v_and_b32 v{GT + 1}, 3, v{vL}
    v_cmp_eq_u32 vcc, 0, v{GT + 1}
    v_lshlrev_b32 v{GT + 1}, 2, v{vL}
    v_cndmask_b32 v{vS3}, 2.0, v{GT + 1}, vcc
    v_and_b32 v{vYs}, 0x1f0, v{L16}
    v_lshl_add_u32 v{vYs}, v{GT}, 10, v{vYs}
    s_lshl_b32 s3, s{sT}, 5
    v_add_lshl_u32 v{vBi}, v{vTau}, s3, 1''')
    pre_reads(m, frs[:dt['pre']])
    m.visit('.Lwy' if o['upto'] >= 'F' else '.Lend')
    P.raw(m.arrive(vRC, H_H), dep=[T('hst')])
    m.stamp(None, 'harr')
    m.poll_inline(vRC, H_H)
    m.stamp(None, 'hhop')
    frag_loads(P.raw, 0, dt['lead'])
    S = Seg('D')
    hl = frag_loads(S.add, dt['lead'], 64)
    S.spread(hl, 0, 4 * (64 - dt['lead']), 1)
    S.spread([S.add(f'buffer_load_dwordx4 {vr(ST + 4 * i, 4)}, v{L16}, {Q(qS)}, s{t1} offen offset:{1024 * i} sc1') for i in range(4)],
             dt['st2'], dt['st2'] + 16, 1)
    S.add(f'buffer_load_ushort v{vBi + 1}, v{vBi}, {Q(qB)}, 0 offen offset:8', at=300, by=310)
    S.add(f'buffer_load_ushort v{vBi}, v{vBi}, {Q(qB)}, 0 offen', at=304, by=314)
    ops = stats(S.add, D, None)
    ops += S.lines(f'''v_mul_f32 v{K1}, {hexf(-KG)}, v{ST + 1}
    v_mul_f32 v{K1 + 4}, v{ST + 2}, v{ST + 1}
    v_mul_f32 v{K1 + 2}, v{ST + 1}, v{ST + 1}
    v_mul_f32 v{K1 + 2}, {hexf(0.044715)}, v{K1 + 2}
    v_mul_f32 v{K1 + 2}, v{K1 + 2}, v{K1}
    v_cvt_pk_bf16_f32 v{NM}, -v{ST}, -v{ST}''')
    wr = [S.add(f'ds_write_b32 v{vSw}, v{K1 + 2 * v} offset:{128 * v}') for v in range(3)]
    ops += wr
    for v in range(3):
        for u in range(2):
            ops.append(S.add(f'ds_read_b128 {vr(K2 + 8 * v + 4 * u, 4)}, v{vSr} offset:{128 * v + 64 * u}', after=(wr[v], 0)))
    for a, b in ((NM, NM + 4), (K1, K1 + 1), (K1 + 2, K1 + 3), (K1 + 4, K1 + 5)):
        ops.append(S.add(f'v_mov_b32 v{b}, v{a}', lat=1))
        ops.append(S.add(f'v_permlane32_swap_b32 v{a}, v{b}'))
    ops += [S.add(f'v_mov_b32 v{NM + 4 * u + e}, v{NM + 4 * u}') for u in range(2) for e in range(1, 4)]
    S.spread(ops, *dt['stat'], 4)
    nt = [0]

    def z2_gelu(tiles):
        chains = []
        for n in tiles:
            for u in range(2):
                for i in range(4):
                    a, e = aZ2 + (2 * n + u) * 4 + i, 4 * u + i
                    c = []
                    gelu(lambda x, **kw: c.append((x, kw)), a, K2 + e, K2 + 8 + e, K2 + 16 + e, GT + nt[0] % 4)
                    nt[0] += 1
                    s_, q_ = ST + 4 * i + 2 * u, ST + 4 * i + 2 * u + 1
                    if n == 1:
                        c.append((f'v_add_f32 v{s_}, v{a}, v{a - 8}', {}))
                    elif n:
                        c.append((f'v_add_f32 v{s_}, v{s_}, v{a}', {}))
                    c.append((f'v_fma_f32 v{q_}, v{a}, v{a}, v{q_}' if n else f'v_mul_f32 v{q_}, v{a}, v{a}', {}))
                    chains.append(c)
        return [S.add(x, **kw) for x, kw in interleave(chains, 2)]

    spq = []
    for a, b, n in dt['sp']:
        spq += [int(a + (b - a) * i / n) for i in range(n)]
    nsp = 0
    for p in range(0, 462, 2):
        s = p // 28
        if p % 28 == 0 and s:
            S.add('s_barrier', dep=[T('sd', s), T('sr', s - 1)], sig=[T('sf', s)])
            if s + 4 < ND:
                g0 = max(2 * p - 24, dt['d5'] + dt['dstep'] * (s - 1))
                S.spread(stage_dma(S.add, s + 4, [T('sf', s)]), g0, g0 + (dt['dstep'] if g0 > 2 * p - 24 else 52), 2)
            if s in o.get('d_st', ()):
                m.stamp(S, f'd{s}')
        m.pair(S, frs[p:p + 2], pre=p < dt['pre'])
        if p + 2 == 132:
            S.ramp(z2_gelu([0, 1, 2, 3]), 270, dt['ga'])
        if p + 1 == 231:
            gb = dt['gb']
            S.ramp(z2_gelu([4, 5, 6]), max(dt['ga'], 468), gb)
            ops = []
            for i in range(2):
                for ab, bm in ((0, 0x3), (8, 0xc)):
                    ops += [S.add(f'v_add_f32_dpp v{ST + 4 * i + e}, v{ST + 4 * i + ab + e}, v{ST + 4 * i + ab + e} row_ror:8 row_mask:0xf bank_mask:{hex(bm)}')
                            for e in range(4)]
            for ab, bm, sh in ((0, 0x5, 'row_shl:4'), (4, 0xa, 'row_shr:4')):
                ops += [S.add(f'v_add_f32_dpp v{ST + e}, v{ST + ab + e}, v{ST + ab + e} {sh} row_mask:0xf bank_mask:{hex(bm)}') for e in range(4)]
            for qp in ('[1,0,3,2]', '[2,3,0,1]'):
                ops += [S.add(f'v_add_f32_dpp v{ST + e}, v{ST + e}, v{ST + e} quad_perm:{qp} row_mask:0xf bank_mask:0xf') for e in range(4)]
            S.lines(f's_add_u32 s{t1}, s{t1}, {ST3 - ST2}\ns_add_u32 s{t2}, s{t2}, {ST3 - ST2}', at=400)
            ops.append(S.add(f'buffer_store_dwordx4 {vr(ST, 4)}, v{vS3}, {Q(qS)}, s{t2} offen sc1', sig=[T('st3')], lat=0))
            S.ramp(ops, gb, gb + 8)
            g = gb + 8 + dt['arr3']
            S.add(m.arrive(vRC, H_ST3), dep=[T('st3')], at=g, by=g)
            g += dt['poll3']
            m.poll_hidden(S, vRC, H_ST3, g, g + dt['chk3'], T('ok', H_ST3))
            g += dt['chk3']
            for i in range(4):
                S.add(f'buffer_load_dwordx4 {vr(ST + 4 * i, 4)}, v{L16}, {Q(qS)}, s{t1} offen offset:{1024 * i} sc1', dep=[T('ok', H_ST3)],
                      by=g + 1 + i, lat=dt['ld3'])
            g += dt['ld3']
            ops = stats(S.add, FH, None)
            ops.append(S.add(f'v_mul_f32 v{ST}, -v{ST}, v{ST + 1}'))
            wr = [S.add(f'ds_write_b32 v{vSw}, v{ST + v} offset:{128 * v}') for v in range(2)]
            ops += wr
            for u in range(2):
                for v in range(2):
                    ops.append(S.add(f'ds_read_b128 {vr(K2 + 8 * v + 4 * u, 4)}, v{vSr} offset:{128 * v + 64 * u}', after=(wr[v], 0)))
            S.ramp(ops, g, g + 12)
            S.lines(f'''s_mul_i32 s3, s{sR}, 28672
            s_add_u32 s{t3}, s{t6}, s3
            s_add_u32 s{t3}, s{t3}, {Z2 - WIN}
            s_add_u32 s{t4}, s{t3}, 4096''', at=g - 40)
            ops = []
            for n in range(7):
                b = aZ2 + 8 * n
                ops += [S.add(f'v_fma_f32 v{b + e}, v{b + e}, v{K2 + 8 + e}, v{K2 + e}') for e in range(8)]
                ops += [S.add(f'v_cvt_pk_bf16_f32 v{b + e}, v{b + 2 * e}, v{b + 2 * e + 1}') for e in range(4)]
                ops.append(S.add(f'buffer_store_dwordx4 {vr(b, 4)}, v{L16}, {Q(qS)}, s{(t3, t4)[n >> 2]} offen offset:{1024 * (n & 3)} sc1',
                                 sig=[T('z2st')], lat=0))
            S.ramp(ops, g + 20, g + dt['nrm'])
            g += dt['nrm'] + dt['arrz']
            gz = g
            S.add('s_barrier', dep=[T('z2st')], sig=[T('z2all')], at=g, by=g)
            S.add(m.arrive(vCA, H_Z2), dep=[T('z2all')], by=g)
            print('z2 arrival at gap', g)
            S.lines(f's_lshl_b32 s{sP}, s{sT}, 17\ns_add_u32 s{sP}, s{sP}, {WSP}')
        done = (p + 2 - 231) // 7
        while nsp < min(2 * done, len(spq), 64):
            x = frag_loads(S.add, nsp, nsp + 1)[0]
            x.at, x.by = spq[nsp], spq[nsp] + 2
            nsp += 1
    m.stamp(S, 'd')
    issue, test = m.poll_txt(vCP, H_Z2)
    early = gz + dt['pollz'] < 920
    if early:
        S.add(issue, at=gz + dt['pollz'], by=gz + dt['pollz'] + 2)
    P.seg(S)
    m.mark('.Lwz')
    quads = [(n, u) for n in range(7) for u in range(2)]
    nq = [0]

    def win(cnt, fill=()):
        fill = list(fill)
        txt = []
        for n, u in quads[nq[0]:nq[0] + cnt]:
            gelu4(txt.append, aZ1 + (2 * n + u) * 4, u, GT)
        nq[0] += cnt
        step = max(1, len(txt) // max(1, len(fill)))
        for i, t in enumerate(txt):
            if fill and i % step == 0:
                a, kw = fill.pop(0)
                P.raw(a, **kw)
            P.raw(t)
        for a, kw in fill:
            P.raw(a, **kw)
    P.lines(f'v_lshlrev_b32 v{NM}, 16, v{vBi}\nv_lshlrev_b32 v{NM + 4}, 16, v{vBi + 1}')
    P.lines('\n'.join(f'v_mov_b32 v{NM + 4 * u + e}, v{NM + 4 * u}' for u in range(2) for e in range(1, 4)))
    if not early:
        P.raw(issue)
    win(dt['win1'])
    slow, back = k.label('slow'), k.label('back')
    P.raw(f'{test}\ns_cbranch_scc0 {slow}\n{back}:')
    m.slow.append(m.spin(slow, back, issue, test) + f'\ns_branch {back}')
    m.stamp(None, 'zhop')
    fill = []
    rec = lambda t, **kw: fill.append((t, kw))
    stage_dma(P.raw, ND)
    for s in range(ND + 1, ND + dt.get('wst', 3)):
        stage_dma(rec, s)
    win(dt['win2'], fill)
    frs = e_frags()
    P.raw('s_barrier', dep=[T('sd', ND), T('sr', ND - 1)], sig=[T('sf', ND)])
    m.stamp(None, 'e0')
    S = Seg('E')
    late = []
    for s in range(ND + dt.get('wst', 3), ND + 4):
        late += stage_dma(S.add, s)
    late += stage_dma(S.add, ND + 4)
    S.spread(late, 0, 4 * len(late), 2)
    if nsp < 64:
        ops = frag_loads(S.add, nsp, 64)
        S.spread(ops, 4 * len(late), 4 * len(late) + 6 * len(ops), 2)
    chains = []
    for n, u in quads[nq[0]:]:
        for i in range(4):
            c = []
            gelu(lambda x, **kw: c.append((x, kw)), aZ1 + (2 * n + u) * 4 + i, K1 + u, K1 + 2 + u, K1 + 4 + u, GT + nt[0] % 4)
            nt[0] += 1
            chains.append(c)
    S.ramp([S.add(x, **kw) for x, kw in interleave(chains, 2)], *dt['eg'])
    up = o['upto'] >= 'F'
    t, u_ = GT, GT + 1
    ops = S.lines(f'''v_lshrrev_b32 v{vWu}, 4, v{vL}
    v_lshlrev_b32 v{vWu}, 1, v{vWu}
    v_xor_b32 v{vWu}, v{vWu}, v{vL}
    v_and_b32 v{vWu}, 7, v{vWu}
    v_lshlrev_b32 v{vWu}, 4, v{vWu}
    v_lshrrev_b32 v{vWu + 1}, 3, v{vL}
    v_lshl_add_u32 v{vWu}, v{vWu + 1}, 11, v{vWu}
    s_lshl_b32 s3, s{sRg}, 4
    s_lshl_b32 s{sa}, s{sC}, 7
    s_add_u32 s3, s3, s{sa}
    v_add_u32 v{vWu}, s3, v{vWu}''')
    ops += [S.add(f'v_add_u32 v{vWu + i}, {16384 * i - 1024 * (i & 3)}, v{vWu}') for i in range(1, 7)]
    ops.append(S.add(f's_cmp_eq_u32 s{sW}, 1\ns_cselect_b32 s3, 16384, 0'))
    ops.append(S.add(f'v_add_u32 v{vWu + 6}, s3, v{vWu + 6}'))
    ops.append(S.add(f's_cmp_eq_u32 s{sW}, 2\ns_cselect_b32 s3, 16384, 0'))
    ops.append(S.add(f'v_subrev_u32 v{vWu}, s3, v{vWu}'))
    ops += S.lines(f'''s_and_b32 s3, s{sC}, 1
    s_mul_i32 s{t3}, s{sC}, 7
    s_add_u32 s{t3}, s{t3}, s3
    s_lshl_b32 s{t3}, s{t3}, 10
    s_lshl_b32 s{t1}, s{sT}, 17
    s_add_u32 s{t1}, s{t1}, {YY}
    s_add_u32 s{t3}, s{t3}, s{t1}
    s_add_u32 s{t4}, s{t3}, 4096
    s_lshl_b32 s3, s3, 9
    s_lshr_b32 s{t2}, s{sC}, 1
    s_mul_i32 s{t2}, s{t2}, {7 * 2048}
    s_add_u32 s{t2}, s{t2}, s3
    s_add_u32 s{t2}, s{t2}, s{t1}
    s_add_u32 s{t2}, s{t2}, {3 * 2048}''')
    S.spread(ops, 520, 620, 4)
    e0, e1 = dt['esp']
    for p in range(0, 448, 2):
        s = ND + p // 28
        if p % 28 == 0 and p:
            S.add('s_barrier', dep=[T('sd', s), T('sr', s - 1)], sig=[T('sf', s)])
            if s + 4 < ND + NE or up:
                S.spread(stage_dma(S.add, s + 4, [T('sf', s)]), 2 * p - 24, 2 * p + 28, 2)
            if s in o.get('d_st', ()):
                m.stamp(S, f'e{s - ND}')
        m.pair(S, frs[p:p + 2])
        for ks in range(p // 7, (p + 2) // 7):
            if ks < 32:
                for i, x in enumerate(frag_loads(S.add, 64 + 2 * ks, 66 + 2 * ks)):
                    x.at = int(e0 + (e1 - e0) * (2 * ks + i) / 64)
                    x.by = x.at + 2
    m.stamp(S, 'e')
    if up:
        S.spread([S.add(f'buffer_load_dwordx4 {vr(HR + 4 * i, 4)}, v{L16}, {Q(qS)}, s{t0} offen offset:{1024 * i} sc1') for i in range(4)],
                 760, 790, 2)
        S.add('s_barrier', dep=[T('sd', ND + NE), T('sr', ND + NE - 1)], sig=[T('sf', ND + NE)], by=890)
    for mm in range(4):
        for u in range(2):
            tl = (2 * mm, 2 * mm + 1) if mm < 3 else (6,)
            for n in tl:
                b = (2 * n + u) * 4
                S.lines('\n'.join(f'v_pk_mul_f32 {vr(aZ1 + b + e, 2)}, {vr(aZ1 + b + e, 2)}, {vr(aZ2 + b + e, 2)}' for e in (0, 2)))
            d = aZ2 + (4 * mm + u) * 4 if mm < 3 else aZ2 + 48 + 2 * u
            for i, n in enumerate(tl):
                b = aZ1 + (2 * n + u) * 4
                if mm == 3 and u == 0:
                    continue
                S.lines('\n'.join(f'v_cvt_pk_bf16_f32 v{d + 2 * i + e}, v{b + 2 * e}, v{b + 2 * e + 1}' for e in range(2)))
            if mm < 3:
                S.add(f'buffer_store_dwordx4 {vr(d, 4)}, v{L16}, {Q(qS)}, s{(t3, t4)[mm >> 1]} offen offset:{2048 * (mm & 1) + 1024 * u} sc1',
                      sig=[T('yst')])
    d, b = aZ2 + 48, aZ1 + 48
    S.lines('\n'.join(f'v_cvt_pk_bf16_f32 v{d + e}, v{b + 2 * e}, v{b + 2 * e + 1}' for e in range(2)))
    S.lines(f'v_permlane32_swap_b32 v{d}, v{d + 2}\nv_permlane32_swap_b32 v{d + 1}, v{d + 3}')
    S.add(f'buffer_store_dwordx4 {vr(d, 4)}, v{vYs}, {Q(qS)}, s{t2} offen sc1', sig=[T('yst')])
    P.seg(S)
    m.stamp(None, 'yst')
    if not up:
        P.raw(m.arrive(vRC, H_Y), dep=[T('yst')])


def phase_f(m):
    k, P, o = m.k, m.P, m.o
    ft = dict(lead=20, pre=16)
    ft.update(o.get('f_t', {}))
    s0 = ND + NE
    stage_dma(P.raw, s0 + 4)
    t = GT
    P.lines(f'''v_lshrrev_b32 v{t}, 2, v{vL}
    v_lshlrev_b32 v{rbF}, 7, v{t}
    v_bfe_u32 v{t}, v{vL}, 3, 2
    v_lshl_add_u32 v{rbF}, v{t}, 5, v{rbF}
    v_and_b32 v{t}, 3, v{vL}
    v_lshl_add_u32 v{rbF}, v{t}, 3, v{rbF}''')
    P.lines('\n'.join(f'v_xor_b32 v{rbF + n}, {32 * n}, v{rbF}' for n in range(1, 4)))
    P.lines('\n'.join(f'v_add_u32 v{rbF + 4 + n}, 0x10000, v{rbF + n}' for n in range(8)))
    frs = f_frags()
    pre_reads(m, frs[:ft['pre']])
    for i in range(4):
        unpack(P.raw, accF + 8 * i, HR + 4 * i)
    P.lines(f'''v_bfe_u32 v{vOut}, v{vL}, 4, 1
    v_lshlrev_b32 v{vOut}, 5, v{vOut}
    v_lshrrev_b32 v{t}, 5, v{vL}
    v_lshl_add_u32 v{vOut}, v{t}, 4, v{vOut}
    s_lshl_b32 s3, s{sT}, 5
    v_add_lshl_u32 v{t}, v{vTau}, s3, 11
    s_lshl_b32 s3, s{sC}, 7
    v_add3_u32 v{vOut}, v{vOut}, v{t}, s3
    s_mov_b32 s{sP}, s{t1}
    s_movk_i32 s{t2}, 8192''')
    m.mark('.Lwy')
    m.visit('.Lend')
    P.raw(m.arrive(vRC, H_Y), dep=[T('yst')])
    m.stamp(None, 'yarr')
    m.poll_inline(vRC, H_Y)
    m.stamp(None, 'yhop')
    frag_loads(P.raw, 0, ft['lead'])
    S = Seg('F')
    nl = ft['lead']
    for p in range(0, 224, 2):
        s = s0 + p // 28
        if p % 28 == 0 and p:
            S.add('s_barrier', dep=[T('sd', s), T('sr', s - 1)], sig=[T('sf', s)])
            if s + 4 < s0 + 8:
                S.spread(stage_dma(S.add, s + 4, [T('sf', s)]), 2 * p - 24, 2 * p + 28, 2)
        while nl < min(112, 64 + 2 * (p // 4), ft['lead'] + p // 2 + 1):
            x = frag_loads(S.add, nl, nl + 1)[0]
            x.at = 4 * (nl - ft['lead'])
            x.by = x.at + 1
            nl += 1
        m.pair(S, frs[p:p + 2], pre=p < ft['pre'])
    assert nl == 112
    m.stamp(S, 'f')
    for mm in range(2):
        for u in range(2):
            b = accF + (mm * 2 + u) * 8
            S.lines('\n'.join(f'v_cvt_pk_bf16_f32 v{b + e}, v{b + 2 * e}, v{b + 2 * e + 1}' for e in range(4)))
            S.lines(f'v_permlane16_swap_b32 v{b}, v{b + 2}\nv_permlane16_swap_b32 v{b + 1}, v{b + 3}')
            S.add(f'buffer_store_dwordx4 {vr(b, 4)}, v{vOut}, {Q(qO)}, ' + (f's{t2}' if u else '0') + f' offen offset:{64 * mm}')
    P.seg(S)
```

```python
import sys
from sched import *
from mcommon import *

M16 = 'v_mfma_f32_16x16x32_bf16'
M16S = 'v_mfma_f32_16x16x16_bf16'
M32 = 'v_mfma_f32_32x32x16_bf16'
S32 = 'v_smfmac_f32_32x32x32_bf16'
S16 = 'v_smfmac_f32_16x16x64_bf16'
NAME = 'sequential_preLN__mha_block__mixer_gmlp__prompt_kernel'
MASK = 0x80000000

qX, qW, qS, qD, qWO, qWI, qSP, qB, qWU, qO = 4, 8, 12, 16, 20, 24, 28, 32, 36, 40
sR, sC, sW, sT, sBud, sa, sb, sl, sM0, sP, sRg, sM, t0, t1, t2, sPo, t3, t4, t5, t6 = range(44, 64)
mk1, mk2, mk3 = 64, 66, 68
sPC = 70
PROF0 = 72
L16, L16b, L16c, vRC, vCA, vCP, vOne, vPT = range(8)
ONE4 = 8
vL, vTau, vT0, vT1 = 12, 13, 14, 15
FR, NFR = 16, 16
H_ST1, H_CS1, H_KV, H_O0, H_O1, H_WIN, H_H, H_ST3, H_Z2, H_Y = range(10)
QX = 131072
SCR = 159744
RING = [131072, 0, 28672, 57344, 86016]
Q = lambda q: sr(q, 4)
T = lambda *a: ('t',) + a


def own_layout(o):
    return {0: (0, 128), 7: (6, 122), 14: (20, 122)}[o.get('own', 14)]


def stats(add, n, ST):
    ops = []
    for a, b in ((0, 4), (8, 12), (0, 8)):
        ops += [add(f'v_add_f32 v{ST + a + e}, v{ST + a + e}, v{ST + b + e}') for e in range(4)]
    for t in f'''v_permlane16_swap_b32 v{ST}, v{ST + 1}
    v_permlane16_swap_b32 v{ST + 2}, v{ST + 3}
    v_add_f32 v{ST}, v{ST}, v{ST + 1}
    v_add_f32 v{ST + 2}, v{ST + 2}, v{ST + 3}
    v_permlane32_swap_b32 v{ST}, v{ST + 2}
    v_add_f32 v{ST}, v{ST}, v{ST + 2}
    v_mul_f32 v{ST + 2}, {hexf(1.0 / n)}, v{ST}
    v_mul_f32 v{ST}, {hexf(1.0 / n)}, v{ST}
    v_permlane16_swap_b32 v{ST}, v{ST + 2}
    v_fma_f32 v{ST + 2}, -v{ST}, v{ST}, v{ST + 2}
    v_max_f32 v{ST + 2}, 0, v{ST + 2}
    v_add_f32 v{ST + 2}, {hexf(1e-5)}, v{ST + 2}
    v_rsq_f32 v{ST + 1}, v{ST + 2}'''.split('\n'):
        ops.append(add(t.strip()))
    return ops


class Mega:
    def __init__(self, **opt):
        self.o = dict(prof=None, upto='F', stat_after=4, limit=2.0 ** 64, pf=True, kvpre=3, kvd=7, touch={'wo': 12, 'wu': 31}, lo=2.0 ** -30)
        self.o.update(opt)
        self.k = Kernel(NAME, 256, 256, 163840)
        self.k.force_vgpr = 512
        self.P = Prog()
        self.slow = []
        self.nf = 0
        self.nstamp = 0
        self.names = []
        self.visits = []

    def stamp_txt(self, name):
        i = self.nstamp
        assert PROF0 + 4 + i <= 101
        self.nstamp += 1
        self.names.append(name)
        ins = 's_memrealtime' if self.o['prof'] == 'rt' else 's_memtime'
        t = f'{ins} {sr(PROF0 + 2 * (i & 1), 2)}'
        if i:
            t += f'\ns_mov_b32 s{PROF0 + 3 + i}, s{PROF0 + 2 * ((i - 1) & 1)}'
        return t

    def stamp(self, S, name, **kw):
        if not self.o['prof'] or name in self.o.get('skip', ('e',)):
            return
        t = self.stamp_txt(name)
        if S is None:
            self.P.raw(t)
        else:
            S.marks.setdefault(S.nmain - 1, []).append(t)

    def spin(self, lab, back, issue, test):
        return (f'{lab}:\n{issue}\ns_waitcnt vmcnt(0)\n{test}\ns_cbranch_scc1 {back}\n'
                f's_sub_u32 s{sBud}, s{sBud}, 1\ns_cmp_gt_i32 s{sBud}, 0\ns_cbranch_scc1 {lab}')

    def poll_txt(self, addr, hop, two=False, thr=16):
        issue = f'v_mov_b32 v{vPT}, 0\nbuffer_atomic_add v{vPT}, v{addr}, {Q(qS)}, 0 offen offset:{hop * 4} sc0 sc1'
        test = f'v_readfirstlane_b32 s{sPo}, v{vPT}\n'
        if two:
            test += f'v_readlane_b32 s3, v{vPT}, 1\ns_min_u32 s{sPo}, s{sPo}, s3\n'
        test += f's_cmp_ge_u32 s{sPo}, {thr}'
        return issue, test

    def poll_hidden(self, S, addr, hop, at, chk, tok, dep=(), thr=16, two=False):
        issue, test = self.poll_txt(addr, hop, two, thr=thr)
        self.check_hidden(S, issue, test, at, chk, tok, dep)

    def check_hidden(self, S, issue, test, at, chk, tok, dep=()):
        slow, back = self.k.label('slow'), self.k.label('back')
        S.add(issue, at=at, by=at + 2, lat=chk - at, dep=dep)
        S.add(f'{test}\ns_cbranch_scc0 {slow}\n{back}:', at=chk, by=chk + 2, sig=[tok])
        self.slow.append(self.spin(slow, back, issue, test) + f'\ns_branch {back}')

    def poll_inline(self, addr, hop, two=False):
        issue, test = self.poll_txt(addr, hop, two)
        lab, back = self.k.label('spin'), self.k.label('ok')
        self.P.raw(self.spin(lab, back, issue, test) + f'\n{back}:')

    def visit(self, upto, S=None, gap=None):
        if not self.o.get('visit', True):
            return
        i = len(self.visits)
        self.visits.append(upto)
        t = ''.join(f's_cmp_eq_u32 s{sW}, {w}\ns_cbranch_scc1 .Lvs{i}_{w}\n' for w in range(3))
        t += f's_branch .Lvs{i}_3\n' + ''.join(f'.Lvs{i}_{w}:\n' for w in range(4)) + f'.Lvb{i}:'
        if S is None:
            self.P.raw(t)
        else:
            S.marks.setdefault(gap, []).append(t)

    def mark(self, lab):
        self.P.raw(f'{lab}:')

    def mark_seg(self, S, lab):
        S.marks.setdefault(S.nmain - 1, []).append(f'{lab}:')

    def arrive(self, addr, hop):
        return f'buffer_atomic_add v{vOne}, v{addr}, {Q(qS)}, 0 offen offset:{hop * 4} sc1'

    def pair(self, S, frs, pre=0, **kw):
        ms = []
        for rd, mf, dep, sig in frs:
            d = FR + 4 * (self.nf % NFR)
            self.nf += 1
            if not pre:
                for t in rd(d):
                    S.add(t, dep=dep, sig=sig)
            ms += mf(d)
        ex = set()
        for m in ms:
            ex |= Ins(m).srcAB
        out = []
        for i, m in enumerate(ms):
            out.append(S.add(m, main=True, wslot=(i == 0), extra=(ex if i == 0 else ()), **kw))
        return out

    def phase_a(self):
        import mega_a
        mega_a.phase_a(self)

    def finish(self):
        k, P, o = self.k, self.P, self.o
        P.emit(k)
        if o['upto'] < 'F':
            k('s_waitcnt vmcnt(0) lgkmcnt(0)')
        if o['prof']:
            k('s_waitcnt vmcnt(0) lgkmcnt(0)')
            k(self.stamp_txt('end'))
            k(f's_lshl_b32 s3, s2, 2\ns_add_u32 s3, s3, s{sW}\ns_lshl_b32 s3, s3, 7\ns_add_u32 s3, s3, {TJ}')
            k('s_waitcnt lgkmcnt(0)')
            k('v_mov_b32 v0, 0')
            for i in range(self.nstamp):
                k(f'v_writelane_b32 v0, s{PROF0 + 4 + i if i < self.nstamp - 1 else PROF0 + 2 * (i & 1)}, {i}')
            k(f's_getreg_b32 s{t0}, hwreg(HW_REG_XCC_ID)')
            k(f'v_writelane_b32 v0, s{t0}, 30')
            k(f'v_writelane_b32 v0, s{sBud}, 31')
            k(f'v_lshlrev_b32 v1, 2, v{vL}')
            k('s_mov_b32 exec_hi, 0')
            k(f'buffer_store_dword v0, v1, {Q(qS)}, s3 offen')
            if o.get('dbg') is not None:
                k(f's_cmp_lg_u32 s2, {o["dbg"]}\ns_cbranch_scc1 .Lend\ns_cmp_lg_u32 s{sW}, 0\ns_cbranch_scc1 .Lend')
                k(f'v_subrev_u32 v0, s{PROF0 + 4}, v0\ns_mov_b32 exec_lo, 0xfffe\ns_mov_b32 s{qD + 2}, 64')
                k(f'buffer_store_dword v0, v1, {Q(qD)}, 0 offen')
        k('.Lend:')
        k('s_endpgm')
        for t in self.slow:
            k(t)
        k('.Lcodeend:')
        k('s_endpgm')


def page_stubs(txt, visits):
    import subprocess, tempfile, os
    d = tempfile.mkdtemp()
    open(d + '/a.s', 'w').write(txt)
    subprocess.run(['clang', '-x', 'assembler', '-target', 'amdgcn-amd-amdhsa', '-mcpu=gfx950', '-c', d + '/a.s', '-o', d + '/a.o'], check=True)
    dis = subprocess.run(['llvm-objdump', '-d', d + '/a.o'], capture_output=True, text=True).stdout
    adr = [int(x, 16) for x in re.findall(r'// ([0-9A-F]{12}):', dis)]
    lines = txt.split('\n')
    i0 = lines.index(NAME + ':')
    i1 = lines.index('.section .rodata,"a"')
    ins = [i for i in range(i0, i1) if lines[i].startswith(' ')]
    assert len(ins) == len(adr) and adr[0] == 0, (len(ins), len(adr))
    pos = {ln[:-1]: i for i, ln in enumerate(lines) if ln.endswith(':')}
    n = next(j for j in range(len(ins)) if ins[j] > pos['.Lvb0'])
    print('prologue bytes', adr[n])
    lines[ins[n - 1]] += '\n.p2align 12'
    stubs = []
    shift, page = -adr[n], 1
    end = pos['.Lend']
    while True:
        while n < len(ins) and adr[n] + shift + 4 < 4096 * page:
            n += 1
        if n >= len(ins) or ins[n] > end:
            break
        cand = [j for j in range(n, min(n + 16, len(ins))) if adr[j] + shift + 8 <= 4096 * page + 64]
        best = next((j for j in cand if lines[ins[j - 1]].startswith((' v_mfma', ' v_smfmac'))), cand[0])
        stubs.append(ins[best - 1])
        shift += 8
        page += 1
    add = {}
    done = 0
    for v, upto in enumerate(visits):
        mine = [x for x in range(len(stubs)) if max(pos[f'.Lvb{v}'], done) < stubs[x] < pos[upto]]
        done = pos[upto]
        print(f'visit {v}: pages', [x + 1 for x in mine])
        for w in range(4):
            ch = mine[w::4]
            if ch:
                lines[pos[f'.Lvs{v}_{w}']] = None
            for a, x in enumerate(ch):
                nxt = f'.Lst{ch[a + 1]}' if a + 1 < len(ch) else f'.Lvb{v}'
                add[stubs[x]] = f' s_branch .Lsk{x}\n' + (f'.Lst{x}:' if a else f'.Lvs{v}_{w}:') + f'\n s_branch {nxt}\n.Lsk{x}:'
    out = []
    for i, ln in enumerate(lines):
        if ln is not None:
            out.append(ln)
        if i in add:
            out.append(add[i])
        elif i in stubs:
            out.append(' s_nop 0\n s_nop 0')
    return '\n'.join(out)


def build(path, **opt):
    import mega_b, mega_c
    for kk in list(opt):
        if kk in CFG:
            CFG[kk] = opt.pop(kk)
    m = Mega(**opt)
    m.phase_a()
    up = m.o['upto']
    if up >= 'B':
        mega_b.phase_b(m)
    if up == 'B':
        mega_c.tail_b(m)
    if up >= 'C':
        mega_c.phase_c(m)
    if up >= 'D':
        mega_c.phase_de(m)
    m.finish()
    txt = build_file([m.k], verbose=opt.get('verbose', 1))
    if m.visits:
        txt = page_stubs(txt, m.visits)
    if m.o['prof']:
        txt = txt.replace('.text', '; stamps: ' + ' '.join(m.names) + '\n.text', 1)
    open(path, 'w').write(txt)
    print(path, len(txt), 'bytes')
    return m
```

```python
from mega import *


def phase_a(self):
    k, P, o = self.k, self.P, self.o
    aK, aV, aQ = 80, 112, 144
    rb, xb, xd, wd, csb, csq = 176, 184, 188, 192, 196, 198
    vSr, vP2, wv = 194, 195, 206
    vx = o.get('vx', 1)
    kx = o.get('kx', 4)
    vst, vSw, vcs, vks, vvs, vqw, vfl = 199, 200, 201, 202, 203, 204, 205
    nm, stl, rsv, cs, csa, csf, tmp = 208, 216, 220, 228, 244, 248, 252
    SQ, ST = aQ, aQ + 16
    at_ = dict(r0=0, step=3.5, lat=20, st=(6, 30), flag=40, arr=72, bcs=6, poll=290, chk=350, stat=(410, 470), v0=22, v1=86)
    at_.update(o.get('a_t', {}))
    rot = o.get('rot', (4, 2, 1))
    k.end = '.Lend'
    k('s_cmp_ge_u32 s2, 256')
    k(f's_cbranch_scc1 {k.end}')
    for q, off in ((qX, A_X), (qW, A_WQKV), (qS, A_WS), (qD, A_DBG), (qWO, A_WO), (qWI, A_WIN), (qSP, A_WSP), (qB, A_BSP),
                   (qWU, A_WOUT), (qO, A_OUT)):
        k(f's_load_dwordx2 {sr(q, 2)}, s[0:1], {off}')
    if o['prof']:
        k(self.stamp_txt('start'))
    k(f'''v_lshrrev_b32 v{vT0}, 6, v0
    v_and_b32 v{vL}, 63, v0
    v_readfirstlane_b32 s{sW}, v{vT0}
    s_and_b32 s{sR}, s2, 3
    s_lshl_b32 s{sR}, s{sR}, 2
    s_bfe_u32 s{sa}, s2, {3 | (2 << 16)}
    s_add_u32 s{sR}, s{sR}, s{sa}
    s_lshr_b32 s3, s2, 5
    s_xor_b32 s3, s3, {o.get('cx', 0)}
    s_mul_i32 s{sa}, s{sa}, {rot[0]}
    s_mul_i32 s{sb}, s3, {rot[1]}
    s_add_u32 s{sa}, s{sa}, s{sb}
    s_bfe_u32 s{sC}, s2, {2 | (1 << 16)}
    s_mul_i32 s{sb}, s{sC}, {rot[2]}
    s_add_u32 s{sa}, s{sa}, s{sb}
    s_and_b32 s{sa}, s{sa}, 15
    s_lshl_b32 s{sa}, s{sa}, 7
    s_mul_i32 s{sb}, s{sa}, 3072
    s_lshl_b32 s{sC}, s{sC}, 3
    s_add_u32 s{sC}, s{sC}, s3
    s_lshl_b32 s{sT}, s{sR}, 2
    s_add_u32 s{sT}, s{sT}, s{sW}
    s_lshl_b32 s{sl}, s{sW}, 13
    v_lshrrev_b32 v{vT0}, 3, v{vL}
    v_lshrrev_b32 v{vT1}, 4, v{vL}
    v_xor_b32 v{vT1}, v{vT1}, v{vL}
    v_and_b32 v{vT1}, 7, v{vT1}
    v_and_b32 v{tmp}, 4, v{vT0}
    v_add_u32 v{tmp}, v{tmp}, v{vT0}
    s_lshl_b32 s3, s{sT}, 5
    v_add_u32 v{tmp}, s3, v{tmp}
    v_lshlrev_b32 v{tmp}, 11, v{tmp}
    v_lshl_add_u32 v{xd}, v{vT1}, 4, v{tmp}
    v_xor_b32 v{xd + 1}, 64, v{xd}
    v_add_u32 v{xd + 1}, {16 * 2048 - 1024}, v{xd + 1}
    v_add_u32 v{xd + 2}, {4 * 2048 - 2048}, v{xd}
    v_add_u32 v{xd + 3}, {4 * 2048 - 2048}, v{xd + 1}
    s_lshl_b32 s3, s{sW}, 4
    v_add_u32 v{tmp}, s3, v{vT0}
    v_mul_u32_u24 v{tmp}, 6144, v{tmp}
    v_and_b32 v{vT0}, 2, v{vT0}
    v_xor_b32 v{vT0}, v{vT0}, v{vL}
    v_and_b32 v{vT0}, 7, v{vT0}
    v_lshl_add_u32 v{tmp}, v{vT0}, 4, v{tmp}
    s_lshl_b32 s3, s{sC}, 7
    s_add_u32 s3, s3, 2048
    v_add_u32 v{wd}, s3, v{tmp}
    v_xor_b32 v{wd + 1}, 64, v{wd}
    v_add_u32 v{wd + 1}, {8 * 6144 - 1024}, v{wd + 1}
    v_xor_b32 v{wv}, {128 * vx}, v{wd}
    v_xor_b32 v{wv + 1}, {128 * vx}, v{wd + 1}
    {f'v_xor_b32 v{wd}, {128 * kx}, v{wd}' if kx else ''}
    {f'v_xor_b32 v{wd + 1}, {128 * kx}, v{wd + 1}' if kx else ''}
    s_mov_b32 s{qX + 2}, {S_ * D * 2}
    s_mov_b32 s{qX + 3}, 0x00020000
    s_mov_b32 s{qW + 2}, {D * 3 * D * 2}
    s_mov_b32 s{qW + 3}, 0x00020000
    s_mov_b32 s{qS + 2}, {256 * MB}
    s_mov_b32 s{qS + 3}, 0x00020000
    s_cmp_eq_u32 s2, 0
    s_cselect_b32 s{sM0}, 0, {hex(MASK)}
    v_lshrrev_b32 v{vT0}, 2, v0
    v_and_b32 v{vT1}, 3, v0
    v_lshlrev_b32 v{vT1}, 4, v{vT1}
    v_lshl_add_u32 v{vT0}, v{vT0}, 11, v{vT1}
    v_add_u32 v{vT0}, s{sM0}, v{vT0}
    v_mov_b32 v{csa}, 0
    v_mov_b32 v{csa + 1}, 0
    v_mov_b32 v{csa + 2}, 0
    v_mov_b32 v{csa + 3}, 0
    s_waitcnt lgkmcnt(0)''')
    if o.get('a_st'):
        self.stamp(None, 'arg')

    def kv_dma(i):
        slot = (i % 4) * 32768
        out = [f's_add_u32 m0, s{sl}, {slot}']
        out += [f'buffer_load_dwordx4 v{xd + p}, {Q(qX)}, s{sa} offen offset:{p * 1024} lds' for p in range(4)]
        out += [f's_add_u32 m0, s{sl}, {slot + 4096}']
        out += [f'buffer_load_dwordx4 v{(wd, wv)[p >> 1] + (p & 1)}, {Q(qW)}, s{sb} offen offset:{p * 1024} lds' for p in range(4)]
        out += [f's_add_u32 s{sa}, s{sa}, 128', f's_and_b32 s{sa}, s{sa}, 2047', f's_mul_i32 s{sb}, s{sa}, 3072']
        return out

    def q_dma(b):
        slot = b * 32768
        out = [f's_add_u32 m0, s{sl}, {slot}']
        out += [f'buffer_load_dwordx4 v{xd + p}, {Q(qW)}, s{sb} offen offset:{p * 1024} lds' for p in range(4)]
        out += [f's_add_u32 m0, s{sl}, {slot + 4096}', f's_add_u32 s{sa}, s{sa}, 128', f's_and_b32 s{sa}, s{sa}, 2047',
                f's_mul_i32 s{sb}, s{sa}, 3072']
        out += [f'buffer_load_dwordx4 v{xd + p}, {Q(qW)}, s{sb} offen offset:{p * 1024} lds' for p in range(4)]
        out += [f's_add_u32 s{sa}, s{sa}, 384', f's_and_b32 s{sa}, s{sa}, 2047', f's_mul_i32 s{sb}, s{sa}, 3072']
        return out

    def raw_dma(i):
        for t in kv_dma(i):
            P.raw(t, sig=[T('adma', i)] if 'lds' in t else ())
        if o.get('p_st'):
            self.stamp(None, f'i{i}')
    P.raw(f'buffer_store_dwordx4 {vr(csa, 4)}, v{vT0}, {Q(qS)}, 0 offen offset:{CNT} sc1', sig=[T('zero')])
    raw_dma(0)
    if o['pf']:
        lb = k.label('pc')
        P.raw(f'''s_getpc_b64 {sr(sPC, 2)}
        {lb}:
        s_lshr_b32 s3, s2, 3
        s_lshl_b32 s3, s3, 12
        v_lshl_add_u32 v{tmp}, v0, 4, s3
        v_min_u32 v{tmp}, .Lcodeend-{lb}-16, v{tmp}
        v_mov_b32 v{tmp + 1}, s{sPC + 1}
        v_add_co_u32 v{tmp}, vcc, s{sPC}, v{tmp}
        v_addc_co_u32 v{tmp + 1}, vcc, 0, v{tmp + 1}, vcc
        global_load_dwordx4 {vr(cs, 4)}, {vr(tmp, 2)}, off''')
    P.raw(f'v_lshl_add_u32 v{vfl}, v0, 2, s{sM0}')
    for q, sz in ((qD, 4), (qWO, D * D * 2), (qWI, D * F * 2), (qSP, S_ * S_ * 2), (qB, S_ * 2), (qWU, FH * D * 2), (qO, S_ * D * 2)):
        P.lines(f's_mov_b32 s{q + 2}, {sz}\ns_mov_b32 s{q + 3}, 0x00020000')
    a, b, c_, d_ = csf, csf + 1, csf + 2, csf + 3
    P.lines(f'''s_mov_b32 s{sBud}, 20000
    v_lshlrev_b32 v{L16}, 4, v{vL}
    v_mov_b32 v{vOne}, 1
    v_mov_b32 v{ONE4}, {hex(ONES)}
    v_mov_b32 v{ONE4 + 1}, {hex(ONES)}
    v_mov_b32 v{ONE4 + 2}, {hex(ONES)}
    v_mov_b32 v{ONE4 + 3}, {hex(ONES)}
    v_and_b32 v{a}, 15, v{vL}
    v_lshrrev_b32 v{b}, 4, v{vL}
    v_lshrrev_b32 v{c_}, 1, v{a}
    v_xor_b32 v{c_}, v{c_}, v{b}
    v_lshlrev_b32 v{c_}, 4, v{c_}
    v_lshl_add_u32 v{c_}, v{a}, 7, v{c_}
    v_add_u32 v{xb}, s{sl}, v{c_}
    v_xor_b32 v{xb + 1}, 64, v{xb}
    v_add_u32 v{xb + 2}, 0x10000, v{xb}
    v_add_u32 v{xb + 3}, 0x10000, v{xb + 1}
    v_lshrrev_b32 v{c_}, 5, v{vL}
    v_lshlrev_b32 v{c_}, 13, v{c_}
    v_and_b32 v{d_}, 1, v{b}
    v_lshl_add_u32 v{c_}, v{d_}, 10, v{c_}
    v_lshl_add_u32 v{c_}, v{d_}, 6, v{c_}
    v_lshrrev_b32 v{d_}, 2, v{a}
    v_lshl_add_u32 v{c_}, v{d_}, 7, v{c_}
    v_lshrrev_b32 v{d_}, 3, v{a}
    v_lshl_add_u32 v{c_}, v{d_}, 5, v{c_}
    v_and_b32 v{d_}, 3, v{a}
    v_lshl_add_u32 v{rb}, v{d_}, 3, v{c_}
    v_xor_b32 v{rb + 1}, 32, v{rb}
    v_xor_b32 v{rb + 2}, 64, v{rb}
    v_xor_b32 v{rb + 3}, 0x60, v{rb}
    v_add_u32 v{rb + 4}, 0x10000, v{rb}
    v_add_u32 v{rb + 5}, 0x10000, v{rb + 1}
    v_add_u32 v{rb + 6}, 0x10000, v{rb + 2}
    v_add_u32 v{rb + 7}, 0x10000, v{rb + 3}
    v_and_b32 v{vTau}, 12, v{a}
    v_add_u32 v{vTau}, v{vTau}, v{a}''')
    P.lines(f'''s_bfe_u32 s{t1}, s{sR}, {2 | (1 << 16)}
    s_lshl_b32 s3, s{sW}, 1
    s_add_u32 s3, s3, s{t1}
    s_and_b32 s{t2}, s3, 3
    s_lshl_b32 s{t2}, s{t2}, 5
    v_xor_b32 v{csb}, s{t2}, v{rb}
    s_lshr_b32 s3, s3, 2
    s_lshl_b32 s3, s3, 11
    s_lshr_b32 s{t2}, s{sR}, 3
    s_lshl_b32 s{t3}, s{t2}, 14
    s_add_u32 s3, s3, s{t3}
    v_add_u32 v{csb}, s3, v{csb}
    v_add_u32 v{csb + 1}, 0x10000, v{csb}
    s_lshl_b32 s3, s{sW}, 5
    v_xor_b32 v{csq}, s3, v{rb}
    v_add_u32 v{csq}, {QX}, v{csq}''')
    P.lines(f'''s_lshl_b32 s3, s{sC}, 2
    s_add_u32 s3, s3, s{sW}
    s_lshl_b32 s3, s3, 2
    s_and_b32 s{t3}, s{sR}, 3
    s_add_u32 s3, s3, s{t3}
    s_lshl_b32 s3, s3, 8
    v_add_u32 v{vcs}, s3, v{L16}
    v_mov_b32 v{d_}, {hex(MASK)}
    v_cmp_gt_u32 vcc, 16, v{vL}
    v_cndmask_b32 v{vcs}, v{d_}, v{vcs}, vcc
    s_lshl_b32 s{t1}, s{t1}, 1
    s_add_u32 s{t1}, s{t1}, s{t2}
    s_lshl_b32 s{t1}, s{t1}, 2
    s_add_u32 s{t4}, s{t1}, {CS1}
    s_lshr_b32 s{t5}, s{sR}, 2
    s_lshl_b32 s{t5}, s{t5}, 2
    s_add_u32 s{t5}, s{t5}, {CSQ}''')
    P.lines(f'''s_lshl_b32 s3, s{sT}, 11
    v_mov_b32 v{c_}, s3
    v_cmp_eq_u32 vcc, 0, v{vL}
    v_cndmask_b32 v{vRC}, v{d_}, v{c_}, vcc
    s_lshl_b32 s3, s{sC}, 2
    s_add_u32 s{t1}, s3, s{sW}
    s_lshl_b32 s{t1}, s{t1}, 11
    v_mov_b32 v{c_}, s{t1}
    v_cndmask_b32 v{vCP}, v{d_}, v{c_}, vcc
    v_add_u32 v{c_}, {4 * H_CS1}, v{c_}
    v_cmp_eq_u32 vcc, 1, v{vL}
    v_cndmask_b32 v{vP2}, v{vRC}, v{c_}, vcc
    v_add_lshl_u32 v{c_}, v{vL}, s3, 11
    s_cmp_eq_u32 s{sW}, 0
    s_cselect_b32 s3, 4, 0
    v_cmp_gt_u32 vcc, s3, v{vL}
    v_cndmask_b32 v{vCA}, v{d_}, v{c_}, vcc''')
    P.lines(f'''s_lshl_b32 s{t6}, s{sT}, 12
    s_add_u32 s{t6}, s{t6}, {ST1}
    s_lshl_b32 s3, s{sC}, 8
    s_add_u32 s{t0}, s{t6}, s3
    s_mov_b32 s{mk1}, 0x22222222
    s_mov_b32 s{mk1 + 1}, 0x22222222
    s_mov_b32 s{mk2}, 0x44444444
    s_mov_b32 s{mk2 + 1}, 0x44444444
    s_mov_b32 s{mk3}, 0x88888888
    s_mov_b32 s{mk3 + 1}, 0x88888888
    v_bfe_u32 v{c_}, v{vL}, 2, 2
    v_cmp_eq_u32 vcc, v{b}, v{c_}
    v_and_b32 v{c_}, 0xf0, v{L16}
    v_cndmask_b32 v{vst}, v{d_}, v{c_}, vcc
    s_lshl_b32 s3, s{sW}, 10
    s_add_u32 s3, s3, {SCR}
    v_lshl_add_u32 v{vSr}, v{b}, 4, s3
    v_lshl_add_u32 v{vSw}, v{a}, 2, s3
    v_lshrrev_b32 v{c_}, 5, v{vL}
    v_lshl_add_u32 v{vSw}, v{c_}, 6, v{vSw}''')
    P.lines(f'''v_lshrrev_b32 v{c_}, 5, v{vL}
    v_and_b32 v{d_}, 1, v{b}
    v_lshl_add_u32 v{vks}, v{c_}, 5, v{vTau}
    v_lshl_add_u32 v{vks}, v{d_}, 2, v{vks}
    v_lshlrev_b32 v{vks}, 4, v{vks}
    v_and_b32 v{vvs}, 8, v{a}
    v_add_u32 v{vvs}, v{vvs}, v{a}
    v_lshl_add_u32 v{vvs}, v{d_}, 5, v{vvs}
    v_lshl_add_u32 v{vvs}, v{c_}, 6, v{vvs}
    v_lshlrev_b32 v{vvs}, 4, v{vvs}
    v_lshl_add_u32 v{vqw}, v{c_}, 5, v{a}
    v_lshl_add_u32 v{vqw}, v{d_}, 6, v{vqw}
    s_lshl_b32 s3, s{sW}, 12
    s_add_u32 s3, s3, {QX}
    v_lshl_add_u32 v{vqw}, v{vqw}, 4, s3''')

    if o.get('p_st'):
        self.stamp(None, 'set')
    P.lines(f'''v_subrev_u32 v{tmp}, 2048, v{wd}
    v_subrev_u32 v{tmp + 1}, 2048, v{wd + 1}
    {f'v_xor_b32 v{tmp}, {128 * kx}, v{tmp}' if kx else ''}
    {f'v_xor_b32 v{tmp + 1}, {128 * kx}, v{tmp + 1}' if kx else ''}
    s_mul_i32 s3, s{sR}, {64 * 6144}
    s_add_u32 m0, s{sl}, {QX}''')
    for p in range(2):
        P.raw(f'buffer_load_dwordx4 v{tmp + p}, {Q(qW)}, s3 offen offset:{p * 1024} lds', sig=[T('adma', 1)])
    raw_dma(1)
    S = Seg('A')
    self.visit('.Lq', S, at_['v0'])
    if o['upto'] >= 'B':
        self.visit('.Lwo' if o['upto'] >= 'C' else '.Lend', S, at_['v1'])

    def tr(d, base, addr, t):
        a_ = addr + 512 * t
        return f'ds_read_b64_tr_b16 {vr(d + 2 * t, 2)}, v{base + 4 * (a_ >> 16)} offset:{a_ & 65535}'

    def split_store(acc, so, tok):
        ops = S.lines(f'''v_cvt_pk_bf16_f32 v{acc + 1}, v{acc}, v{acc}
        v_and_b32 v{acc + 2}, 0xffff0000, v{acc + 1}
        v_sub_f32 v{acc + 2}, v{acc}, v{acc + 2}
        v_cvt_pk_bf16_f32 v{acc + 1}, v{acc}, v{acc + 2}''')
        ops.append(S.add(f'buffer_store_dword v{acc + 1}, v{vcs}, {Q(qS)}, s{so} offen sc1', sig=[tok]))
        return ops

    def dma(j):
        if j == 16:
            S.lines(f'''s_lshr_b32 s3, s{sW}, 1
            s_lshl_b32 s{sb}, s3, 8
            s_add_u32 s{sa}, s{sa}, s{sb}
            s_and_b32 s{sa}, s{sa}, 2047
            s_mul_i32 s{sb}, s{sa}, 3072
            s_mul_i32 s3, s3, {32 * 6144}
            s_add_u32 s3, s3, 2048
            v_subrev_u32 v{xd}, s3, v{wd}
            v_subrev_u32 v{xd + 1}, s3, v{wd + 1}
            {f'v_xor_b32 v{xd}, {128 * kx}, v{xd}' if kx else ''}
            {f'v_xor_b32 v{xd + 1}, {128 * kx}, v{xd + 1}' if kx else ''}
            v_add_u32 v{xd + 2}, {32 * 6144 - 2048}, v{xd}
            v_add_u32 v{xd + 3}, {32 * 6144 - 2048}, v{xd + 1}''')
        n = 0
        for t in (kv_dma(j) if j < 16 else q_dma(j - 16)):
            if 'lds' not in t:
                S.add(t)
                continue
            g = int(max(at_['r0'] + at_['step'] * (8 * (j - 2) + n), 32 * (j - 3) - 8 + (4 if j < 19 else 2) * n))
            S.add(t, dep=[T('afull', j - 3)] if j > 3 else (), sig=[T('adma', j)], at=g, by=g + 2, lat=at_['lat'])
            n += 1

    for i in range(16):
        slot = (i % 4) * 32768
        dep = [T('adma', i), T('ard', i - 1)]
        if i == 0:
            dep.append(T('zero'))
        if i == at_['bcs']:
            dep.append(T('cs1'))
        S.add('s_barrier', dep=dep, sig=[T('afull', i)])
        if i == 0 or i in o.get('a_st', ()):
            self.stamp(S, f'a{i}')
        if i == 0:
            S.add(f'buffer_store_dword v{vOne}, v{vfl}, {Q(qD)}, 0 offen sc1', dep=[T('afull', 0)], by=0)
            dma(2)
        if i == at_['bcs']:
            S.add(self.arrive(vCA, H_CS1), dep=[T('afull', i), T('flag')], by=32 * i + 2)
        dma(i + 3)
        if i == 1:
            ops = []
            for kk in range(2):
                for u in range(2):
                    x = ar(8 * kk + 4 * u, 4)
                    s_, q_ = vr(SQ + 8 * u, 4), vr(SQ + 8 * u + 4, 4)
                    ops.append(S.add(f'{M16} {s_}, {vr(ONE4, 4)}, {x}, ' + (s_ if kk else '0')))
                    ops.append(S.add(f'{M16} {q_}, {x}, {x}, ' + (q_ if kk else '0')))
            for e, mk in enumerate((mk1, mk2, mk3)):
                for u in range(2):
                    d, q_ = SQ + 1 + 2 * u, SQ + 8 * u + 4
                    ops.append(S.add(f'v_cndmask_b32 v{d}, v{d if e else q_}, v{q_ + 1 + e}, {sr(mk, 2)}'))
            ops.append(S.add(f'v_mov_b32 v{SQ + 2}, v{SQ + 8}'))
            ops.append(S.add(f'buffer_store_dwordx4 {vr(SQ, 4)}, v{vst}, {Q(qS)}, s{t0} offen sc1', sig=[T('st1')], lat=0))
            S.ramp(ops, *at_['st'])
            self.check_hidden(S, f'buffer_load_dword v{vPT}, off, {Q(qD)}, 0 sc1',
                              f'v_readfirstlane_b32 s{sPo}, v{vPT}\ns_cmp_ge_u32 s{sPo}, 1', at_['flag'], at_['arr'] - 2, T('flag'))
            S.add(self.arrive(vRC, H_ST1), dep=[T('st1'), T('flag')], at=at_['arr'], by=at_['arr'])
            for ks in range(2):
                for t in range(2):
                    S.add(f'ds_read_b64_tr_b16 {vr(cs + 4 + 2 * t, 2)}, v{csq} offset:{16384 * ks + 512 * t}', dep=[T('afull', 1)],
                          at=36 + 10 * ks, by=38 + 10 * ks)
                S.add(f'{M16} {vr(cs + 8, 4)}, {vr(ONE4, 4)}, {vr(cs + 4, 4)}, ' + ('0' if ks == 0 else vr(cs + 8, 4)), by=46 + 10 * ks)
            S.ramp(split_store(cs + 8, t5, T('cs1')), 60, 66)
        if i == 9:
            self.poll_hidden(S, vP2, H_ST1, at_['poll'], at_['chk'], T('ok', H_ST1), two=True)
            S.lines(f'''s_lshl_b32 s{t1}, s{sC}, 12
            s_add_u32 s{t1}, s{t1}, {CS1}''', at=at_['poll'])
            ops = [S.add(f'buffer_load_dwordx4 {vr(ST + 4 * m, 4)}, v{L16}, {Q(qS)}, s{t6} offen offset:{1024 * m} sc1',
                         dep=[T('ok', H_ST1)]) for m in range(4)]
            ops += [S.add(f'buffer_load_dwordx4 {vr(cs + 4 * m, 4)}, v{L16}, {Q(qS)}, s{t1} offen offset:{1024 * m} sc1',
                          dep=[T('ok', H_ST1)]) for m in range(4)]
            S.spread(ops, at_['chk'] + 2, at_['chk'] + 26, 1)
            ops = stats(S.add, D, ST)
            ops.append(S.add(f'v_cvt_pk_bf16_f32 v{nm}, -v{ST}, -v{ST}'))
            wr = S.add(f'ds_write_b32 v{vSw}, v{ST + 1}')
            ops.append(wr)
            ops += [S.add(f'ds_read_b128 {vr(rsv + 4 * u, 4)}, v{vSr} offset:{64 * u}', after=(wr, 0)) for u in range(2)]
            ops.append(S.add(f'v_mov_b32 v{stl + 1}, v{ST + 1}'))
            for x, y in ((nm, nm + 4), (stl + 1, stl + 3)):
                ops.append(S.add(f'v_mov_b32 v{y}, v{x}', lat=1))
                ops.append(S.add(f'v_permlane32_swap_b32 v{x}, v{y}'))
            ops += [S.add(f'v_mov_b32 v{nm + 4 * u + e}, v{nm + 4 * u}') for u in range(2) for e in range(1, 4)]
            S.spread(ops, *at_['stat'], 4)
        if i < 4:
            for t in range(2):
                a_ = slot + 4096 + 512 * t
                S.add(f'ds_read_b64_tr_b16 {vr(csf + 2 * t, 2)}, v{csb + (a_ >> 16)} offset:{a_ & 65535}',
                      dep=[T('afull', i)], sig=[T('ard', i)], at=32 * i, by=32 * i + 4)
            S.add(f'{M16} {vr(csa, 4)}, {vr(ONE4, 4)}, {vr(csf, 4)}, ' + ('0' if i == 0 else vr(csa, 4)), by=32 * i + 16)
            if i == 3:
                S.ramp(split_store(csa, t4, T('cs1')), 32 * i + 20, 32 * i + 30)
        for ks in range(2):
            kk = 2 * i + ks
            for u in range(2):
                a_ = slot + 2048 * u
                S.add(f'ds_read_b128 {ar(8 * kk + 4 * u, 4)}, v{xb + ks + 2 * (a_ >> 16)} offset:{a_ & 65535}',
                      dep=[T('afull', i)], sig=[T('ard', i)])
            for n0 in range(0, 8, 2):
                frs = []
                for n in (n0, n0 + 1):
                    isv = n >> 2
                    rd = lambda d, n=n, isv=isv: [tr(d, rb + (n & 3), slot + ks * 16384 + 4096 + 2048 * isv, t) for t in range(2)]

                    def mf(d, n=n, isv=isv):
                        out = []
                        for u in range(2):
                            x = ar(8 * kk + 4 * u, 4)
                            if isv:
                                c = vr(aV + ((n & 3) * 2 + u) * 4, 4)
                                out.append(f'{M16} {c}, {x}, {vr(d, 4)}, ' + (c if kk else '0'))
                            else:
                                c = vr(aK + (((n >> 1) * 2 + u) * 2 + (n & 1)) * 4, 4)
                                out.append(f'{M16} {c}, {vr(d, 4)}, {x}, ' + (c if kk else '0'))
                        return out
                    frs.append((rd, mf, [T('afull', i)], [T('ard', i)]))
                self.pair(S, frs)
    for n in range(8):
        for u in range(2):
            csr = vr(cs + 2 * n, 2)
            if n >> 2:
                c = vr(aV + ((n & 3) * 2 + u) * 4, 4)
                S.add(f'{M16S} {c}, {vr(nm + 4 * u, 2)}, {csr}, {c}', main=True)
            else:
                c = vr(aK + (((n >> 1) * 2 + u) * 2 + (n & 1)) * 4, 4)
                S.add(f'{M16S} {c}, {csr}, {vr(nm + 4 * u, 2)}, {c}', main=True)
    self.stamp(S, 'kv')
    g0 = S.nmain
    e_len, g_karr, g_kpoll, g_kchk = o.get('q_t', (24, 110, 160, 196))
    ops = S.lines(f'''s_xor_b32 s{t1}, s{sC}, {kx}
    s_lshl_b32 s{t1}, s{t1}, 19
    s_lshl_b32 s3, s{sT}, 12
    s_add_u32 s{t1}, s{t1}, s3
    s_add_u32 s{t1}, s{t1}, {KV}
    s_add_u32 s{t2}, s{t1}, {1 << 18}''', at=g0 - 30)
    if o.get('fill', 1):
        b0, d1 = own_layout(o)
        ops = [S.add(f's_movk_i32 s{t4}, 448'), S.add(f's_cmp_lt_u32 s{sR}, 7\ns_cselect_b32 s{t4}, {b0 + d1 + 96}, s{t4}'),
               S.add(f's_cmp_lt_u32 s{sR}, 4\ns_cselect_b32 s{t4}, {b0 + 128}, s{t4}')]
        ops += S.lines(f'''s_add_u32 s{t4}, s{t4}, s{sR}
        s_xor_b32 s3, s{sC}, {kx}
        s_lshl_b32 s3, s3, 9
        s_add_u32 s{t4}, s{t4}, s3
        s_lshl_b32 s{t4}, s{t4}, 2
        s_add_u32 s{t4}, s{t4}, s{sW}
        s_lshl_b32 s{t4}, s{t4}, 8
        s_add_u32 s{t4}, s{t4}, {WIN}
        v_lshlrev_b32 v{vst}, 2, v{vL}''')
        ops.append(S.add(f'buffer_store_dword v{vOne}, v{vst}, {Q(qS)}, s{t4} offen sc1', sig=[T('kvst')]))
        S.spread(ops, g0 - 60, g0 - 36, 2)
    ops = []
    for hh in range(2):
        for u in range(2):
            b_ = aK + (hh * 2 + u) * 8
            ops += [S.add(f'v_mul_f32 v{b_ + e}, v{b_ + e}, v{stl + 1 + 2 * u}') for e in range(8)]
            ops += [S.add(f'v_cvt_pk_bf16_f32 v{b_ + e}, v{b_ + 2 * e}, v{b_ + 2 * e + 1}') for e in range(4)]
        b_ = aK + hh * 16
        ops += [S.add(f'v_permlane16_swap_b32 v{b_ + e}, v{b_ + 8 + e}') for e in range(4)]
        for f in range(2):
            ops.append(S.add(f'buffer_store_dwordx4 {vr(b_ + 8 * f, 4)}, v{vks}, {Q(qS)}, s{(t1, t2)[hh]} offen offset:{1024 * f} sc1',
                             sig=[T('kvst')]))
    if vx:
        ops += S.lines(f's_xor_b32 s{t1}, s{t1}, {(vx ^ kx) << 19}\ns_xor_b32 s{t2}, s{t2}, {(vx ^ kx) << 19}')
    for n in range(4):
        b_ = aV + n * 8
        ops += [S.add(f'v_mul_f32 v{b_ + e}, v{b_ + e}, v{rsv + e}') for e in range(8)]
        ops += [S.add(f'v_cvt_pk_bf16_f32 v{b_ + e}, v{b_ + 2 * e}, v{b_ + 2 * e + 1}') for e in range(4)]
        ops.append(S.add(f'buffer_store_dwordx4 {vr(b_, 4)}, v{vvs}, {Q(qS)}, s{(t1, t2)[n >> 1]} offen offset:{2048 + 128 * (n & 1)} sc1',
                         sig=[T('kvst')]))
    S.ramp(ops, g0 - 8, g0 + e_len)
    for b in range(4):
        i = 16 + b
        S.add('s_barrier', dep=[T('adma', i), T('ard', i - 1)], sig=[T('afull', i)])
        if i in o.get('a_st', ()):
            self.stamp(S, f'a{i}')
        if b == 0:
            dma(19)
            S.add('s_barrier', dep=[T('kvst')], sig=[T('kvall')], at=g0 + g_karr, by=g0 + g_karr)
            if kx:
                S.add(f'v_xor_b32 v{wv + 1}, {hex(kx << 13)}, v{vCA}', by=g0 + 10)
            S.add(self.arrive(wv + 1 if kx else vCA, H_KV), dep=[T('kvall')], by=g0 + g_karr)
            if vx:
                S.add(f'v_xor_b32 v{wv}, {hex(vx << 13)}, v{vCA}', by=g0 + 10)
                S.add(self.arrive(wv, H_KV), dep=[T('kvall')], by=g0 + g_karr)
            self.poll_hidden(S, vCP, H_KV, g0 + g_kpoll, g0 + g_kchk, T('ok', H_KV), thr=32 if vx else 16)
            S.lines(f'''s_and_b32 s3, s{sW}, 1
            s_lshl_b32 s{sP}, s{sC}, 1
            s_add_u32 s{sP}, s{sP}, s3
            s_lshl_b32 s{sP}, s{sP}, 1
            s_lshr_b32 s3, s{sW}, 1
            s_add_u32 s{sP}, s{sP}, s3
            s_lshl_b32 s{sP}, s{sP}, 17
            s_add_u32 s{sP}, s{sP}, {KV}''', at=g0 + g_kpoll)
            S.lines(f's_lshl_b32 s{t0}, s{sC}, 12\ns_add_u32 s{t0}, s{t0}, {CSQ}', at=g0 - 40)
            S.spread([S.add(f'buffer_load_dwordx4 {vr(cs + 4 * n, 4)}, v{L16}, {Q(qS)}, s{t0} offen offset:{1024 * n} sc1',
                            dep=[T('ok', H_ST1)]) for n in range(4)], g0 + e_len + 4, g0 + e_len + 20, 1)
        for ks in range(8):
            kk = 8 * b + ks
            for n0 in range(0, 4, 2):
                frs = []
                for n in (n0, n0 + 1):
                    rd = lambda d, n=n: [tr(d, rb + n, b * 32768 + (ks & 3) * 2048 + (ks >> 2) * 16384, t) for t in range(2)]

                    def mf(d, n=n):
                        out = []
                        for u in range(2):
                            c = vr(aQ + (((n >> 1) * 2 + u) * 2 + (n & 1)) * 4, 4)
                            out.append(f'{M16} {c}, {vr(d, 4)}, {ar(8 * kk + 4 * u, 4)}, ' + (c if kk else '0'))
                        return out
                    frs.append((rd, mf, [T('afull', i)], [T('ard', i)]))
                self.pair(S, frs)
    ops = []
    for t in range(o['kvpre']):
        for f in range(4):
            ops.append(S.add(f'buffer_load_dwordx4 {ar(16 * t + 4 * f, 4)}, v{L16}, {Q(qS)}, s{sP} offen offset:{1024 * f} sc1',
                             dep=[T('ok', H_KV)]))
        S.add(f's_add_u32 s{sP}, s{sP}, 4096')
    S.spread(ops, g0 + g_kchk + 8, g0 + 262, 1)
    S.lines(f'''v_mul_f32 v{stl + 1}, {hexf(32 ** -0.5 * LOG2E)}, v{stl + 1}
    v_mul_f32 v{stl + 3}, {hexf(32 ** -0.5 * LOG2E)}, v{stl + 3}''', by=g0 + 200)
    for n in range(4):
        for u in range(2):
            c = vr(aQ + (((n >> 1) * 2 + u) * 2 + (n & 1)) * 4, 4)
            S.add(f'{M16} {c}, {vr(cs + 4 * n, 4)}, {vr(nm + 4 * u, 4)}, {c}', main=True)
    self.stamp(S, 'q')
    if o['upto'] >= 'B':
        import mega_b
        mega_b.setup(self, S, g0, xb)
    P.seg(S)
    self.mark('.Lq')
    for hh in range(2):
        for u in range(2):
            b_ = aQ + (hh * 2 + u) * 8
            P.lines('\n'.join(f'v_mul_f32 v{b_ + e}, v{b_ + e}, v{stl + 1 + 2 * u}' for e in range(8)))
            P.lines('\n'.join(f'v_cvt_pk_bf16_f32 v{b_ + e}, v{b_ + 2 * e}, v{b_ + 2 * e + 1}' for e in range(4)))
            P.raw(f'ds_write_b128 v{vqw}, {vr(b_, 4)} offset:{hh * 2048 + u * 256}', sig=[T('qw')])
```

```python
from mega import *

O_, L_ = 80, 184
SB = [144, 160, 208]
aQF, aONE, aWU, aWI, aSP = 128, 160, 176, 192, 224
vIdx, vOA, vOP, vOs = 200, 201, 202, 203
vCA2, vXw, vXr = 205, 206, 207
vQ0, vQ1, vWi, vWiR = 224, 225, 226, 227
vWiS, vWiC, vSp0, vSp1, vSpR0, vSpR1, vWo, vX, vLw, vLr, tb = 244, 245, 246, 247, 248, 249, 250, 251, 252, 253, 254
SWI = [64, 65, 66, 67, 68, 69, t5, t6]
XR = 64
XCH, LX = 131072, 124 * 1024
WQ = 31 * 1024


def setup(m, S, g0, xb):
    t, u = tb, tb + 1
    ux = m.o.get('ux', 6)
    ops = S.lines(f'''s_mul_i32 s{sRg}, s{sW}, {WQ}
    s_lshl_b32 s{sM0}, s{sRg}, 4
    s_sub_u32 s3, s{sRg}, s{sl}
    s_add_u32 s3, s3, 8192
    v_add_u32 v{vSpR0}, s3, v{xb}
    v_xor_b32 v{vSpR1}, 64, v{vSpR0}
    v_mov_b32 v{vIdx}, 0xdddddddd
    s_and_b32 s{t3}, s{sW}, 1
    s_and_b32 s{t4}, s{sW}, 2
    s_lshl_b32 s3, s{t4}, 1
    s_add_u32 s3, s3, s{t3}
    s_lshl_b32 s3, s3, 11
    s_add_u32 s3, s3, {QX}
    v_add_u32 v{vQ1}, s3, v{L16}
    v_xor_b32 v{vQ0}, 0x2000, v{vQ1}
    s_lshl_b32 s3, s{sW}, 13
    s_add_u32 s3, s3, {XCH}
    v_add_u32 v{vXw}, s3, v{L16}
    v_xor_b32 v{vXr}, 0x4000, v{vXw}
    s_lshl_b32 s3, s{sW}, 9
    s_add_u32 s3, s3, {LX}
    v_lshl_add_u32 v{vLw}, v{vL}, 2, s3
    v_xor_b32 v{vLr}, 0x400, v{vLw}
    v_mov_b32 v{u}, {hex(MASK)}''')
    ops += S.lines(f'''s_lshl_b32 s3, s{sR}, 2
    s_add_u32 s3, s3, s{t4}
    s_lshl_b32 s3, s3, 9
    s_add_u32 s3, s3, s{t3}
    s_lshl_b32 s3, s3, 2
    v_lshl_add_u32 v{vOA}, v{vL}, 11, s3
    s_lshl_b32 s3, s{sT}, 11
    v_lshl_add_u32 v{vOP}, v{vL}, 2, s3
    v_cmp_gt_u32 vcc, 2, v{vL}
    v_cndmask_b32 v{vOA}, v{u}, v{vOA}, vcc
    v_cndmask_b32 v{vOP}, v{u}, v{vOP}, vcc
    s_lshl_b32 s3, s{sC}, 2
    v_and_b32 v{vCA2}, 4, v{vL}
    v_mul_u32_u24 v{vCA2}, {ux}, v{vCA2}
    v_xor_b32 v{vCA2}, s3, v{vCA2}
    v_and_b32 v{t}, 3, v{vL}
    v_add_lshl_u32 v{vCA2}, v{t}, v{vCA2}, 11
    v_cmp_gt_u32 vcc, {8 if ux else 4}, v{vL}
    v_cndmask_b32 v{vCA2}, v{u}, v{vCA2}, vcc''')
    ops += S.lines(f'''v_and_b32 v{vOs}, 0xf0, v{L16}
    v_bfe_u32 v{t}, v{vL}, 4, 1
    v_lshl_add_u32 v{vOs}, v{t}, 10, v{vOs}
    v_lshrrev_b32 v{t}, 5, v{vL}
    v_lshl_add_u32 v{vOs}, v{t}, 8, v{vOs}''')
    a0, a1 = vSp0, vSp1
    own = m.o.get('own', 14)
    b0, d1 = own_layout(m.o)
    ops += S.lines(f'''v_lshrrev_b32 v{t}, 4, v{vL}
    s_lshl_b32 s3, s{t4}, 1
    s_and_b32 s{t1}, s{sC}, 1
    s_sub_u32 s3, s3, s{t1}
    v_add_u32 v{t}, s3, v{t}
    v_min_u32 v{t}, 6, v{t}
    v_lshrrev_b32 v{a0}, 2, v{t}
    v_mul_u32_u24 v{a0}, s{t3}, v{a0}
    s_lshl_b32 s{t1}, s{sC}, 9
    s_add_u32 s{t1}, s{t1}, {(WIN >> 10) + 7}
    s_mul_i32 s3, s{t3}, 7
    s_sub_u32 s3, s{t1}, s3
    v_add_u32 v{vWiS}, s3, v{t}
    s_mul_i32 s3, s{t3}, {231 - b0}
    s_sub_u32 s3, 224, s3
    s_add_u32 s3, s3, s{t1}
    v_add_u32 v{t}, s3, v{t}
    v_mul_u32_u24 v{a1}, {d1}, v{a0}
    v_add_u32 v{t}, v{a1}, v{t}
    s_mul_i32 s3, s{t3}, 3
    s_sub_u32 s3, 7, s3
    v_sub_u32 v{a1}, s3, v{a0}
    v_lshl_add_u32 v{vWiC}, v{a1}, 5, v{t}
    s_xor_b32 s3, s{sR}, {f's{sC}' if own else 0}
    s_lshl_b32 s3, s3, 1''')
    if own:
        ops += S.lines(f'''s_xor_b32 s{t1}, s{t3}, 1
        s_and_b32 s{t1}, s{t1}, {own & 1}
        s_or_b32 s{t1}, s{t1}, s3
        v_cmp_eq_u32 vcc, s{t1}, 0
        v_cndmask_b32 v{t}, v{t}, v{vWiS}, vcc
        v_cndmask_b32 v{a1}, v{a1}, {own}, vcc''')
        if m.o.get('dsw', 1):
            assert own == 14
            ops.append(S.add(f's_cmp_eq_u32 s{sR}, 0\ns_cselect_b32 s{t1}, s{sC}, s{sR}\ns_lshl_b32 s{t1}, s{t1}, 1'))
            ops.append(S.add(f's_cmp_eq_u32 s3, 0\ns_cselect_b32 s3, 0, s{t1}'))
    ops += S.lines(f'''v_mad_u32_u24 v{a0}, v{a1}, s3, v{t}
    v_add_lshl_u32 v{a1}, v{a1}, v{a0}, 10
    v_lshlrev_b32 v{a0}, 10, v{a0}''')
    for i in range(8):
        ops.append(S.add(f'v_readlane_b32 s{SWI[i]}, v{(a0, a1)[i >> 2]}, {16 * (i & 3)}'))
    ops += S.lines(f'''s_lshr_b32 s3, s{sR}, 2
    s_lshl_b32 s3, s3, 6
    s_and_b32 s{t1}, s{sR}, 3
    s_add_u32 s3, s3, s{t1}
    s_lshl_b32 s3, s3, 2
    v_and_b32 v{t}, 0xf0, v{L16}
    v_lshl_add_u32 v{vWiC}, v{vWiC}, 10, v{t}
    v_add_u32 v{vWiC}, s3, v{vWiC}
    s_lshl_b32 s{sM}, s{t4}, 30
    s_lshl_b32 s3, s{t4}, 3
    s_sub_u32 s3, 64, s3
    v_cmp_gt_u32 vcc, s3, v{vL}
    v_cndmask_b32 v{vWiC}, v{u}, v{vWiC}, vcc
    v_add_u32 v{vWiS}, s{sM}, v{L16}
    v_lshrrev_b32 v{t}, 2, v{vL}
    v_lshlrev_b32 v{vWiR}, 7, v{t}
    v_bfe_u32 v{t}, v{vL}, 3, 2
    v_lshl_add_u32 v{vWiR}, v{t}, 5, v{vWiR}
    v_and_b32 v{t}, 3, v{vL}
    v_lshl_add_u32 v{vWiR}, v{t}, 3, v{vWiR}
    v_add_u32 v{vWiR}, s{sRg}, v{vWiR}''')
    ops += S.lines(f'''v_lshrrev_b32 v{t}, 3, v{vL}
    v_and_b32 v{u}, 4, v{t}
    v_add_u32 v{u}, v{u}, v{t}
    s_lshl_b32 s3, s{sT}, 5
    v_add_lshl_u32 v{vSp0}, v{u}, s3, 12
    v_lshrrev_b32 v{u}, 4, v{vL}
    v_xor_b32 v{vSp1}, v{u}, v{vL}
    v_and_b32 v{vSp1}, 7, v{vSp1}
    v_lshl_add_u32 v{vSp0}, v{vSp1}, 4, v{vSp0}
    s_lshl_b32 s3, s{sC}, 8
    v_add_u32 v{vSp0}, s3, v{vSp0}
    v_xor_b32 v{vSp1}, 64, v{vSp0}
    v_lshlrev_b32 v{vWo}, 1, v{u}
    v_xor_b32 v{vWo}, v{vWo}, v{vL}
    v_and_b32 v{vWo}, 7, v{vWo}
    s_sub_u32 s3, 8, s{t4}
    v_cmp_gt_u32 vcc, s3, v{vWo}
    v_lshlrev_b32 v{vWo}, 4, v{vWo}
    s_mul_i32 s3, s{sR}, {64 * F * 2}
    s_mul_i32 s{t1}, s{t3}, {FH * 2}
    s_add_u32 s3, s3, s{t1}
    s_mul_i32 s{t1}, s{sC}, 224
    s_add_u32 s3, s3, s{t1}
    s_lshl_b32 s{t1}, s{t4}, 6
    s_add_u32 s3, s3, s{t1}
    v_mul_u32_u24 v{vWi}, {F * 2}, v{t}
    v_add3_u32 v{vWi}, v{vWi}, v{vWo}, s3
    v_mov_b32 v{vX}, {hex(MASK)}
    v_cndmask_b32 v{vWi}, v{vX}, v{vWi}, vcc
    v_lshl_add_u32 v{vWo}, v{t}, 11, v{vWo}
    s_lshl_b32 s{t1}, s{sC}, 7
    v_add_u32 v{vWo}, s{t1}, v{vWo}
    v_and_b32 v{vX}, 1, v{u}
    v_lshlrev_b32 v{vX}, 5, v{vX}
    v_lshrrev_b32 v{u}, 1, v{u}
    v_lshl_add_u32 v{vX}, v{u}, 4, v{vX}
    s_lshl_b32 s3, s{sT}, 5
    v_add_lshl_u32 v{u}, v{vTau}, s3, 11
    v_add3_u32 v{vX}, v{vX}, v{u}, s{t1}
    v_and_b32 v{t}, 4, v{vL}
    v_cmp_eq_u32 vcc, 0, v{t}
    v_cndmask_b32 v{tb}, 0, v{ONE4}, vcc
    v_cndmask_b32 v{tb + 1}, v{ONE4}, 0, vcc''')
    ops += [S.add(f'v_mov_b32 v{O_ + i}, 0') for i in range(64)]
    ops += [S.add(f'v_mov_b32 v{L_ + i}, 0') for i in range(16)]
    S.ramp(ops, g0 + 40, g0 + 250)
    for x in ops:
        x.at = g0 + 30
    S.lines('\n'.join(f'v_accvgpr_write_b32 a{aONE + i}, v{tb + (i >> 1)}' for i in range(4)), by=g0 + 255)


def phase_b(m):
    k, P, o = m.k, m.P, m.o
    P.raw('s_barrier', dep=[T('qw')])
    for i in range(4):
        for f in range(2):
            P.raw(f'ds_read_b128 {ar(aQF + 8 * i + 4 * f, 4)}, v{(vQ0, vQ1)[i >> 1]} offset:{(i & 1) * 4096 + f * 1024}')
    seq = [(t, i) for t in range(30) for i in range(4)] + [(30, 0), (30, 1), (31, 0), (31, 1), (30, 2), (30, 3), (31, 2), (31, 3)]
    NB = len(seq)
    KVr = lambda t, f: ar(16 * (t % 8) + 4 * f, 4)
    QF = lambda i, f: ar(aQF + 8 * i + 4 * f, 4)
    S = Seg('B')
    ex = lambda s, a, b: '\n'.join(f'v_exp_f32 v{s + e}, v{s + e}' for e in range(a, b))
    gap = lambda n, j: 6 * n + j
    seen = set()

    def qk(n, f, tail=None, **kw):
        t, i = seq[n]
        s = vr(SB[n % 3], 16)
        e = ()
        if t not in seen:
            seen.add(t)
            e = regs('a', 16 * (t % 8), 16) if t else regs('a', 0, 8)
        S.add(f'{M32} {s}, {KVr(t, f)}, {QF(i, f)}, ' + (s if f else '0'), main=True, tail=tail, gapb=0, nfree=1, extra=e, wslot=bool(e), **kw)

    def pv(n, f, tail1, tail2):
        t, i = seq[n]
        p = vr(SB[n % 3] + 8 * f, 8)
        S.add(f'{S32} {vr(O_ + 16 * i, 16)}, {KVr(t, 2 + f)}, {p}, v{vIdx}', main=True, tail=tail1, gapb=0, nfree=2)
        S.add(f'{S16} {vr(L_ + 4 * i, 4)}, {ar(aONE, 4)}, {p}, v{vIdx}', main=True, tail=tail2, gapb=8, nfree=2)

    side = {}

    def at(n, text, j=2, pre='', post='', **kw):
        side.setdefault(n, []).append((j, pre, text, post, kw))
    ld = [(t, f) for t in range(o['kvpre'], 32) for f in range(4)]
    n, li = 0, 0
    p0, p1 = o.get('pause', (0, 0))
    mind = 99
    while li < len(ld):
        cnt = 0
        while li + cnt < len(ld) and cnt < 2 and not p0 <= n < p1 and 4 * (ld[li + cnt][0] - o['kvd']) + ld[li + cnt][1] <= n:
            cnt += 1
        for j in ((), (5,), (2, 5))[cnt]:
            t, f = ld[li]
            li += 1
            mind = min(mind, 4 * t - 1 - n)
            at(n, f'buffer_load_dwordx4 {KVr(t, f)}, v{L16}, {Q(qS)}, s{sP} offen offset:{1024 * f} sc1', j, lat=0,
               post=f's_add_u32 s{sP}, s{sP}, 4096' if f == 3 else '')
        n += 1
    print('K/V minimum lead (bodies):', mind)
    for i, (name, n) in enumerate(o.get('touch', {}).items()):
        q, lines = {'wo': (qWO, 16), 'wu': (qWU, 28), 'wi': (qWI, 56), 'sp': (qSP, 64)}[name]
        tv = FR + 24 + i
        at(n - 1, f'''v_add_u32 v{tv}, s3, v{vL}
        v_lshlrev_b32 v{tv}, 7, v{tv}
        v_cmp_gt_u32 vcc, {lines}, v{vL}
        v_cndmask_b32 v{tv}, 2.0, v{tv}, vcc''', 5, pre=f's_lshl_b32 s3, s2, 2\ns_add_u32 s3, s3, s{sW}\ns_mul_i32 s3, s3, {lines}')
        at(n, f'buffer_load_dword v{tv}, v{tv}, {Q(q)}, 0 offen', lat=0)
    bt = dict(wi=(16, 2), sp=(32, 2), wir=(50, 1), wis=(60, 2.5), spr=(62, 1), sps=(80, 2.5), woA=(56, 1.5), woB=(79, 1.5), woC=(91, 1.5),
              arr=107, x=108, poll=119, chk=126, wul=(49, 1.5), wus=(100, 1))
    bt.update(o.get('b_t', {}))
    tm = lambda name, i: bt[name][0] + int(bt[name][1] * i)
    b_arr, b_x, b_poll, b_chk = bt['arr'], bt['x'], bt['poll'], bt['chk']
    nt = 'nt ' if o.get('nt', 0) else ''
    for i in range(8):
        at(tm('wi', i), f'buffer_load_dwordx4 v{vWi}, {Q(qWI)}, s{sa} offen {nt}lds', sig=[T('wid', i)], lat=0,
           pre=f's_add_u32 m0, s{sRg}, {1024 * i}\ns_mov_b32 s{sa}, {i * 8 * F * 2}')
    cs_, rw = FR, FR + 16
    at(tm('wir', 0) - 1, '\n'.join(f'v_xor_b32 v{rw + n}, {32 * n}, v{vWiR}' for n in range(1, 4)))
    for i in range(8):
        n = tm('wir', i)
        ks, tl = i >> 2, i & 3
        for t in range(2):
            at(n, f'ds_read_b64_tr_b16 {ar(aWI + 4 * i + 2 * t, 2)}, v{rw + tl if tl else vWiR} offset:{4096 * ks + 2048 * t}', 2,
               dep=[T('wid', 4 * ks + 3)], sig=[T('stgA')], lat=0)
        c = vr(cs_ + 4 * tl, 4)
        at(n + 1, f'{M16} {c}, {vr(ONE4, 4)}, {ar(aWI + 4 * i, 4)}, ' + (c if ks else '0'), 1, lat=0)
        at(tm('wis', i), f'buffer_store_dwordx4 {ar(aWI + 4 * i, 4)}, v{vWiS if tl == 3 else L16}, {Q(qS)}, s{SWI[i]} offen sc1', 4, sig=[T('wist')], lat=0)
        assert tm('wis', i) > n
    n = tm('wir', 7) + 3
    at(n - 1, '\n'.join(f'v_mov_b32_dpp v{cs_}, v{cs_ + 4 * g} quad_perm:[0,1,2,3] row_mask:{hex(1 << g)} bank_mask:0xf' for g in range(1, 4)))
    at(n, f'''v_cvt_pk_bf16_f32 v{cs_ + 1}, v{cs_}, v{cs_}
    v_and_b32 v{cs_ + 1}, 0xffff0000, v{cs_ + 1}
    v_sub_f32 v{cs_ + 1}, v{cs_}, v{cs_ + 1}
    v_cvt_pk_bf16_f32 v{cs_}, v{cs_}, v{cs_ + 1}''')
    n = max(n, bt.get('cs', 0))
    at(n, f'buffer_store_dword v{cs_}, v{vWiC}, {Q(qS)}, 0 offen sc1', 4, sig=[T('wist')], lat=0)
    at(b_arr, m.arrive(vCA2, H_WIN), 4, dep=[T('wist')], lat=0)
    assert b_arr > max(n, tm('wis', 7))
    ux, vU = o.get('ux', 6), FR + 28
    at(tm('wul', 0) - 2, f'v_xor_b32 v{vU}, {128 * ux}, v{vWo}', 5)
    at(tm('wul', 0) - 3, f's_lshl_b32 s{t0}, s{t0}, 16', 1, pre=f'''s_mul_i32 s{t1}, s{sT}, 43
    s_lshr_b32 s{t1}, s{t1}, 7
    s_mul_i32 s{t2}, s{t1}, 3
    s_sub_u32 s{t2}, s{sT}, s{t2}
    s_mul_i32 s{t0}, s{t1}, 7
    s_add_u32 s{t0}, s{t0}, s{t2}
    s_and_b32 s{sl}, s{t2}, 1
    s_and_b32 s{t2}, s{t2}, 2
    s_add_u32 s{t0}, s{t0}, s{t2}
    s_add_u32 s{t0}, s{t0}, 2
    s_lshl_b32 s{sl}, s{sl}, 14''')
    at(tm('wul', 0) - 1, f's_cmp_lt_u32 s{sT}, 24\ns_cselect_b32 s{t0}, s{t0}, s{t1}\ns_cselect_b32 s{sl}, s{sl}, 0', 1,
       pre=f'''s_add_u32 s{t2}, s{sT}, 24
    s_bfe_u32 s{t1}, s{t2}, {1 | 3 << 16}
    s_mul_i32 s{t1}, s{t1}, 7
    s_bfe_u32 s{sPC}, s{t2}, {4 | 1 << 16}
    s_add_u32 s{t1}, s{t1}, s{sPC}
    s_and_b32 s{t2}, s{t2}, 1
    s_lshl2_add_u32 s{t1}, s{t2}, s{t1}
    s_lshl_b32 s{t1}, s{t1}, 16
    s_xor_b32 s{sPC}, s{sC}, {ux}''')
    n = tm('wul', 3) + 3
    if o.get('fown', 1):
        at(n, f's_cmp_lt_u32 s{sT}, 40\ns_cselect_b32 s{t2}, 24, 40', 1,
           pre=f's_mul_i32 s{t0}, s{sPC}, 3\ns_add_u32 s{t0}, s{t0}, 1\ns_lshr_b32 s{t0}, s{t0}, 1')
        at(n + 1, f's_cmp_lt_u32 s{sT}, 24\ns_cselect_b32 s{t2}, 0, s{t2}\ns_cselect_b32 s{t0}, s{t0}, s{t1}', 1, pre=f's_add_u32 s{t1}, s{t2}, s{sPC}')
        at(n + 2, f's_cmp_eq_u32 s{sT}, s{t0}\ns_cselect_b32 s{t1}, s{t2}, s{sT}', 1)
        at(n + 3, f's_cmp_eq_u32 s{sT}, s{t2}\ns_cselect_b32 s{t1}, s{t0}, s{t1}', 1)
    at(n + 5, f's_add_u32 s{sPC}, s{sPC}, {WUP}', 1,
       pre=f's_lshl_b32 s{sPC}, s{sPC}, 6\ns_add_u32 s{sPC}, s{sPC}, s{t1 if o.get("fown", 1) else sT}\ns_lshl_b32 s{sPC}, s{sPC}, 12')
    assert n + 5 < tm('wus', 0)
    for i in range(4):
        pre = ('', f's_add_u32 s{t1}, s{t0}, s{sl}\ns_add_u32 s{t1}, s{t1}, 16384', f's_sub_u32 s{t1}, s{t0}, s{sl}\ns_add_u32 s{t1}, s{t1}, 32768',
               f's_add_u32 s{t1}, s{t0}, 49152')[i]
        at(tm('wul', i), f'buffer_load_dwordx4 {ar(aWU + 4 * i, 4)}, v{vU}, {Q(qWU)}, s{t1 if i else t0} offen', lat=0, pre=pre)
        at(tm('wus', i), f'buffer_store_dwordx4 {ar(aWU + 4 * i, 4)}, v{L16}, {Q(qS)}, s{sPC} offen offset:{1024 * i} sc1', 4,
           sig=[T('wist')], lat=0)
    assert b_arr > tm('wus', 3)
    for i in range(8):
        p = i & 3
        at(tm('sp', i), f'buffer_load_dwordx4 v{(vSp0, vSp1)[p & 1]}, {Q(qSP)}, s{sa} offen {nt}lds', sig=[T('spd', i)], lat=0,
           pre=f's_add_u32 m0, s{sRg}, {8192 + 1024 * i}\ns_mov_b32 s{sa}, {(16 * (p & 1) + 4 * (p >> 1)) * 4096 + 128 * (i >> 2)}')
    for i in range(8):
        ks, u = i >> 1, i & 1
        at(tm('spr', i), f'ds_read_b128 {ar(aSP + 4 * i, 4)}, v{(vSpR0, vSpR1)[ks & 1]} offset:{4096 * (ks >> 1) + 2048 * u}', 2,
           dep=[T('spd', 4 * (ks >> 1) + 3)], sig=[T('stgB')], lat=0)
        pre = {0: f's_lshl_b32 s{sb}, s{sT}, 17\ns_lshl_b32 s3, s{sC}, 13\ns_add_u32 s{sb}, s{sb}, s3\ns_add_u32 s{sb}, s{sb}, {WSP}',
               4: f's_add_u32 s{sb}, s{sb}, 4096'}.get(i, '')
        at(tm('sps', i), f'buffer_store_dwordx4 {ar(aSP + 4 * i, 4)}, v{L16}, {Q(qS)}, s{sb} offen offset:{1024 * (i & 3)} sc1', 4,
           sig=[T('ost')], lat=0, pre=pre)
        assert tm('sps', i) > tm('spr', i)
    for i in range(31):
        n, dep = (tm('woB', i), [T('stgA')]) if i < 8 else (tm('woC', i - 8), [T('stgB')]) if i < 16 else (tm('woA', i - 16), [])
        at(n, f'buffer_load_dwordx4 v{vWo}, {Q(qWO)}, s{sa} offen lds', dep=dep, sig=[T('wod')], lat=0,
           pre=f's_add_u32 m0, s{sRg}, {1024 * i}\ns_add_u32 s{sa}, s{sM0}, {16384 * i}')
    assert tm('woB', 0) > tm('wir', 7) and tm('woC', 0) > tm('spr', 7)
    for i in range(4):
        at(b_x + i, f'buffer_load_dwordx4 {vr(XR + 4 * i, 4)}, v{vX}, {Q(qX)}, ' + (f's{sa}' if i & 1 else '0') + f' offen offset:{64 * (i >> 1)}',
           lat=0, pre=f's_movk_i32 s{sa}, 8192' if i & 1 else '')
    n0 = NB - 5
    for i in range(2):
        for q in range(4):
            at(n0 + i + (q + 1) // 2, f'ds_write_b128 v{vXw}, {vr(O_ + 16 * i + 4 * q, 4)} offset:{4096 * i + 1024 * q}', (5, 2)[q & 1],
               sig=[T('xw')], lat=0)
        at(n0 + i + 1, f'ds_write_b32 v{vLw}, v{L_ + 4 * i} offset:{256 * i}', 4, sig=[T('xw')], lat=0)
    at(NB - 1, 's_barrier', 1, dep=[T('xw')], sig=[T('xall')], lat=0)
    for q in range(8):
        at(NB - 1, f'ds_read_b128 {vr(O_ + 4 * q, 4)}, v{vXr} offset:{1024 * q}', (2, 2, 2, 4, 4, 5, 5, 5)[q], dep=[T('xall')], sig=[T('xrd')], lat=0)
    for i in range(2):
        at(NB - 1, f'ds_read_b32 v{L_ + 4 * i}, v{vLr} offset:{256 * i}', 5, dep=[T('xall')], sig=[T('xrd')], lat=0)
    at(NB - 8, f's_add_u32 s{t2}, s{t1}, 65536', 1, pre=f'''s_lshl_b32 s{t1}, s{sR}, 2
    s_add_u32 s{t1}, s{t1}, s{t4}
    s_lshl_b32 s{t1}, s{t1}, 5
    s_lshl_b32 s3, s{sC}, 1
    s_add_u32 s3, s3, s{t3}
    s_add_u32 s{t1}, s{t1}, s3
    s_lshl_b32 s{t1}, s{t1}, 11
    s_add_u32 s{t1}, s{t1}, {OO}''')

    def flush(n, j):
        lst = side.get(n, [])
        while lst and lst[0][0] <= j:
            jj, pre, text, post, kw = lst.pop(0)
            S.lines(pre, at=gap(n - 2, 0))
            S.add(text, at=gap(n, jj), by=gap(n, jj), **kw)
            S.lines(post, by=gap(n + 1, 1))
    for n in side:
        side[n].sort(key=lambda x: x[0])
    for n in range(NB):
        s = SB[n % 3]
        if n == b_poll:
            m.poll_hidden(S, vCP, H_WIN, gap(n, 2), gap(b_chk, 2), T('ok', H_WIN), thr=128 if o.get('ux', 6) else 64)
        if n == 0:
            qk(0, 0)
            qk(0, 1)
            qk(1, 0, ex(s, 0, 8))
            flush(0, 2)
        else:
            if n + 1 < NB:
                qk(n + 1, 0, ex(s, 0, 3))
            else:
                S.add('s_nop 0', main=True, tail=ex(s, 0, 3), gapb=0)
            flush(n, 0)
            pv(n - 1, 1, ex(s, 3, 6), ex(s, 6, 8))
            flush(n, 2)
        if n + 1 < NB:
            qk(n + 1, 1, ex(s, 8, 11))
        else:
            S.add('s_nop 0', main=True, tail=ex(s, 8, 11), gapb=0)
        flush(n, 3)
        pv(n, 0, ex(s, 11, 14), ex(s, 14, 16))
        flush(n, 5)
        if n in o.get('b_st', ()):
            m.stamp(S, f'b{n}')
    pv(NB - 1, 1, None, None)
    m.stamp(S, 'att')
    P.seg(S)
    finish_o(P.lines, merge=True)
    m.stamp(None, 'ost')


def finish_o(emit, merge):
    for i in range(2):
        b, l = O_ + 32 + 16 * i, L_ + 8 + 4 * i
        if merge:
            emit(f'v_add_f32 v{l}, v{l}, v{L_ + 4 * i}')
        emit(f'v_rcp_f32 v{l + 2}, v{l}')
        if merge:
            emit('\n'.join(f'v_pk_add_f32 {vr(b + e, 2)}, {vr(b + e, 2)}, {vr(b - 32 + e, 2)}' for e in range(0, 16, 2)))
        emit('\n'.join(f'v_pk_mul_f32 {vr(b + e, 2)}, {vr(b + e, 2)}, {vr(l + 2, 2)} op_sel_hi:[1,0]' for e in range(0, 16, 2)))
        for h in range(2):
            d = O_ + 16 * i + 4 * h
            emit('\n'.join(f'v_cvt_pk_bf16_f32 v{d + e}, v{b + 8 * h + 2 * e}, v{b + 8 * h + 2 * e + 1}' for e in range(4)))
            emit(f'buffer_store_dwordx4 {vr(d, 4)}, v{vOs}, {Q(qS)}, s{(t1, t2)[i]} offen offset:{512 * h} sc1', sig=[T('ost')])


def check(m):
    k, P, o = m.k, m.P, m.o
    fb, back = k.label('fb'), k.label('fbk')
    t = SB[0]
    b = O_ + 32
    P.raw(f'v_pk_mul_f32 {vr(t, 2)}, {vr(b, 2)}, 0')
    P.lines('\n'.join(f'v_pk_fma_f32 {vr(t, 2)}, {vr(b + e, 2)}, 0, {vr(t, 2)}' for e in range(2, 32, 2)))
    P.raw(f'''v_add_f32 v{t}, v{t}, v{t + 1}
    v_add_f32 v{t + 1}, v{t}, v{L_ + 8}
    v_add_f32 v{t + 1}, v{t + 1}, v{L_ + 12}
    v_min_f32 v{t + 2}, v{L_ + 8}, v{L_ + 12}
    v_cmp_ngt_f32 vcc, {hexf(o['limit'])}, v{t + 1}
    s_mov_b64 {sr(sPC, 2)}, vcc
    v_cmp_nlt_f32 vcc, {hexf(o['lo'])}, v{t + 2}
    s_or_b64 vcc, vcc, {sr(sPC, 2)}
    s_cbranch_vccnz {fb}
    {back}:''')
    out = [f'{fb}:', 's_waitcnt vmcnt(0)']
    e = lambda x, **kw: out.extend(x.split('\n'))
    s, cm, mx, kv = SB[0], SB[1], SB[2], FR
    e(f's_lshl_b32 s{sP}, s{sC}, 1\ns_add_u32 s{sP}, s{sP}, s{t3}\ns_lshl_b32 s{sP}, s{sP}, 18\ns_add_u32 s{sP}, s{sP}, {KV}')
    e(f's_add_u32 s{sPC + 1}, s{sP}, {64 * 4096}')
    for i in (2, 3):
        l1, l2 = k.label('fb'), k.label('fb')
        ld = lambda f: f'buffer_load_dwordx4 {vr(kv + 4 * f, 4)}, v{L16}, {Q(qS)}, s{sPC} offen offset:{1024 * f} sc1'
        qf = lambda f: ar(aQF + 8 * i + 4 * f, 4)
        e(f'v_mov_b32 v{mx}, 0xff800000\ns_mov_b32 s{sPC}, s{sP}\n{l1}:\n{ld(0)}\n{ld(1)}\ns_add_u32 s{sPC}, s{sPC}, 4096\ns_waitcnt vmcnt(0)')
        e(f'{M32} {vr(s, 16)}, {vr(kv, 4)}, {qf(0)}, 0\n{M32} {vr(s, 16)}, {vr(kv + 4, 4)}, {qf(1)}, {vr(s, 16)}')
        for j in range(0, 16, 2):
            e(f'v_max3_f32 v{mx}, v{s + j}, v{s + j + 1}, v{mx}')
        e(f's_cmp_lg_u32 s{sPC}, s{sPC + 1}\ns_cbranch_scc1 {l1}')
        e(f'v_mov_b32 v{mx + 1}, v{mx}\nv_permlane32_swap_b32 v{mx}, v{mx + 1}\nv_max_f32 v{mx}, v{mx}, v{mx + 1}')
        for j in range(16):
            e(f'v_sub_f32 v{cm + j}, 0, v{mx}\nv_mov_b32 v{O_ + 16 * i + j}, 0')
        for j in range(4):
            e(f'v_mov_b32 v{L_ + 4 * i + j}, 0')
        e(f's_mov_b32 s{sPC}, s{sP}\n{l2}:\n{ld(0)}\n{ld(1)}\n{ld(2)}\n{ld(3)}\ns_add_u32 s{sPC}, s{sPC}, 4096\ns_waitcnt vmcnt(0)')
        e(f'{M32} {vr(s, 16)}, {vr(kv, 4)}, {qf(0)}, {vr(cm, 16)}\n{M32} {vr(s, 16)}, {vr(kv + 4, 4)}, {qf(1)}, {vr(s, 16)}')
        for j in range(16):
            e(f'v_exp_f32 v{s + j}, v{s + j}')
        for f in range(2):
            e(f'{S32} {vr(O_ + 16 * i, 16)}, {vr(kv + 8 + 4 * f, 4)}, {vr(s + 8 * f, 8)}, v{vIdx}')
            e(f'{S16} {vr(L_ + 4 * i, 4)}, {ar(aONE, 4)}, {vr(s + 8 * f, 8)}, v{vIdx}')
            e('s_nop 15')
        e(f's_cmp_lg_u32 s{sPC}, s{sPC + 1}\ns_cbranch_scc1 {l2}')
    finish_o(e, merge=False)
    e(f's_waitcnt vmcnt(0)\ns_branch {back}')
    m.slow.append('\n'.join(out))
```

```python
from mega import *
import mega_b as B
import math

KG = 2 * math.sqrt(2 / math.pi) * LOG2E
accC, rbC, vS2, SQ = 224, 176, 184, 188
ND, NE = 17, 16
aZ2, aZ1, K2, ST, GT, NM, K1 = 80, 136, 192, 216, 232, 236, 244
vSw, vSr, vS3, vYs, vBi = 250, 251, 252, 253, 254
vWu, HR, rbF, accF, vDw, vOut = vT0, 216, 120, 160, 212, 214
MS = 16
KMAP = [7 * (q // 3) + (2, 3, 6)[q % 3] for q in range(24)] + [7 * (c >> 1) + 4 * (c & 1) + mm for mm in (1, 0) for c in range(16)]
FG = [(0, 114688), (11, RING[2]), (18, RING[3]), (25, RING[4]), (32, RING[1]), (39, 114688), (50, RING[2]), (56, 0)]
VP = [192, 196, 200, 204, 208, 232, 236, 240, 244]


def slot_of(s):
    return RING[s % 5] if s < ND else RING[(2, 3, 4, 1)[(s - ND) % 4]]


def f_group(q):
    g = max(i for i in range(7) if FG[i][0] <= q)
    return g, FG[g][1] + 4096 * (q - FG[g][0])


def wu_dma(add, q0, q1, dep=()):
    ops = []
    for q in range(q0, q1):
        g, a = f_group(q)
        add(f's_mov_b32 s{sa}, {q * 4096}')
        add(f's_add_u32 m0, s{sM}, {a}')
        ops.append(add(f'buffer_load_dwordx4 v{vWu}, {Q(qS)}, s{sa} offen sc1 lds', dep=list(dep), sig=[T('sd', ND + NE + g)]))
    return ops


def wu_reg(add, q, reg):
    add(f's_mov_b32 s{sl}, {q * 4096}')
    return add(f'buffer_load_dwordx4 {reg}, v{vWu}, {Q(qS)}, s{sl} offen sc1')
LB = (L16, L16b, L16c)


def tail_b(m):
    B.check(m)
    m.P.raw(m.arrive(B.vOA, H_O0), dep=[T('ost')])


QUADS = [(j, n) for jr, nr in ((range(8), range(7)), (range(8, 16), (4, 5, 6)), (range(8, 16 - MS // 4), range(4)),
                               (range(16 - MS // 4, 16), (2, 3)), (range(16 - MS // 4, 16), (0, 1))) for j in jr for n in nr]
sSp, sZ, sH = mk1, mk2, mk3
OPT = {}


def z_dma(add, s, kw):
    ops, last = [], None
    for i, (j, n) in enumerate(QUADS[7 * (s - ND):7 * (s - ND) + 7]):
        if last is None or j != last[0] or n - last[1] not in (1, 2, 3) or i - last[2] != n - last[1]:
            if last and j == last[0]:
                add(f's_add_u32 s{sb}, s{sb}, {1024 * (n - last[1])}')
            else:
                if OPT.get('esw', 1):
                    add(f's_cmp_eq_u32 s{sR}, {j}\ns_cselect_b32 s{sb}, 0, {28672 * j}')
                else:
                    add(f's_xor_b32 s{sb}, s{sR}, {j}')
                    add(f's_mul_i32 s{sb}, s{sb}, 28672')
                add(f's_add_u32 s{sb}, s{sb}, s{sZ + (n >> 2)}')
                if n & 3:
                    add(f's_add_u32 s{sb}, s{sb}, {1024 * (n & 3)}')
            add(f's_add_u32 m0, s{sRg}, {slot_of(s) + 1024 * i}')
            last = (j, n, i)
        ops.append(add(f'buffer_load_dwordx4 v{L16}, {Q(qS)}, s{sb} offen offset:{1024 * (i - last[2])} sc1 lds', **kw))
    return ops


def sp_loads(add, i0, i1):
    ops = []
    for i in range(i0, i1):
        if i & 3 == 0 and OPT.get('esw', 1):
            if i & 4:
                add(f's_add_u32 s{sP}, s{sP}, 4096')
            else:
                add(f's_cmp_eq_u32 s{sR}, {i >> 3}\ns_cselect_b32 s{sP}, 0, {i << 10}' if i else f's_lshl_b32 s{sP}, s{sR}, 13')
                add(f's_add_u32 s{sP}, s{sP}, s{sSp}')
        elif i & 3 == 0:
            add(f's_xor_b32 s{sP}, s{sSp}, {i << 10}')
        ops.append(add(f'buffer_load_dwordx4 {ar(4 * (i % 64), 4)}, v{L16}, {Q(qS)}, s{sP} offen offset:{1024 * (i & 3)} sc1'))
    return ops


def stage_dma(add, s, dep=()):
    slot = slot_of(s)
    ops = []
    kw = dict(dep=list(dep), sig=[T('sd', s)])
    if s < ND + NE:
        if s == ND - 1:
            add(f's_add_u32 m0, s{t5}, {slot}')
            add(f's_sub_u32 s{sb}, s{sb}, s{sRg}')
            add(f's_add_u32 s{sb}, s{sb}, s{t5}')
            return [add(f'buffer_load_dwordx4 v{L16}, {Q(qS)}, s{sb} offen offset:{1024 * i} sc1 lds', **kw) for i in range(4)]
        if s >= ND:
            return z_dma(add, s, kw)
        for i in range(7):
            if i in (0, 4):
                add(f's_add_u32 m0, s{sRg}, {slot + 1024 * i}')
            ops.append(add(f'buffer_load_dwordx4 v{L16}, {Q(qS)}, s{sb} offen offset:{1024 * (i & 3)} sc1 lds', **kw))
            if i in (3, 6):
                add(f's_add_u32 s{sb}, s{sb}, {4096 if i == 3 else 28672 - 4096}')
    return ops


def h_loads(add, i0, i1):
    ops = []
    for i in range(i0, i1):
        if i & 3 == 0 and OPT.get('dsw', 1):
            add(f's_cmp_eq_u32 s{sC}, {i >> 2}\ns_cselect_b32 s{sP}, 0, {i << 10}')
            add(f's_add_u32 s{sP}, s{sP}, s{sH}')
        elif i & 3 == 0:
            add(f's_xor_b32 s{sP}, s{t0}, {i << 10}')
        ops.append(add(f'buffer_load_dwordx4 {ar(4 * i, 4)}, v{L16}, {Q(qS)}, s{sP} offen offset:{1024 * (i & 3)} sc1'))
    return ops


def frag_loads(add, i0, i1, **kw):
    ops = []
    for i in range(i0, i1):
        ops.append(add(f'buffer_load_dwordx4 {ar(4 * (i % 64), 4)}, v{L16}, {Q(qS)}, s{sP} offen offset:{1024 * (i & 3)} sc1', **kw))
        if i & 3 == 3:
            add(f's_add_u32 s{sP}, s{sP}, 4096')
    return ops


def pre_reads(m, frs):
    for i, f in enumerate(frs):
        for t in f[0](FR + 4 * ((m.nf + i) % NFR)):
            m.P.raw(t, dep=f[2], sig=f[3])


def unpack(add, dst, src):
    for e in range(4):
        add(f'v_lshlrev_b32 v{dst + 2 * e}, 16, v{src + e}')
        add(f'v_and_b32 v{dst + 2 * e + 1}, 0xffff0000, v{src + e}')


def tr_frag(rb, addr, acc, bslot, n, sd, sg, bv=None):
    def rd(d):
        return [f'ds_read_b64_tr_b16 {vr(d + 2 * t, 2)}, v{rb + n + 4 * ((addr + 2048 * t) >> 16)} offset:{(addr + 2048 * t) & 65535}'
                for t in range(2)]

    def mf(d):
        out = []
        for u in range(2):
            c = vr(acc + (((n >> 1) * 2 + u) * 2 + (n & 1)) * 4, 4)
            out.append(f'{M16} {c}, {vr(d, 4)}, {ar(8 * bslot + 4 * u, 4) if bv is None else vr(bv + 4 * u, 4)}, {c}')
        return out
    return rd, mf, sd, sg


def ring_rd(p, s0):
    a = slot_of(s0 + p // 28) + (p % 28) * 1024
    return lambda d: [f'ds_read_b128 {vr(d, 4)}, v{LB[a >> 16]} offset:{a & 65535}']


def d_frags(own):
    out = []
    first = [(1, range(7))] + ([(0, range(7))] if own == 14 else [])
    order = [(z, ks, n) for ks in range(2 if own else 0) for z, tiles in first for n in tiles]
    order += [(z, ks, n) for z, tiles in GROUPS for ks in range(33) for n in tiles if (z, ks, n) not in order]
    if 1:
        if 1:
            for isz2, ks, n in order:
                p = len(out)

                def mf(d, isz2=isz2, ks=ks, n=n):
                    r = []
                    for u in range(2):
                        x = ar(8 * ks + 4 * u, 4) if ks < 32 else vr(NM + 4 * u, 4)
                        c = vr((aZ2 if isz2 else aZ1) + (2 * n + u) * 4, 4)
                        r.append(f'{M16} {c}, ' + (f'{x}, {vr(d, 4)}' if isz2 else f'{vr(d, 4)}, {x}') + ', ' + (c if ks else '0'))
                    return r
                out.append((ring_rd(p, 0), mf, [T('sf', p // 28)], [T('sr', p // 28)]))
    return out


def e_order():
    out = []
    for s in range(NE):
        qs = list(enumerate(QUADS[7 * s:7 * s + 7]))
        while qs:
            run = [x for x in qs if x[1][0] == qs[0][1][0] and x[0] - qs[0][0] == x[1][1] - qs[0][1][1]]
            qs = qs[len(run):]
            out += [(4 * j + w, n, slot_of(ND + s) + 7168 * w + 1024 * i) for w in range(4) for i, (j, n) in run]
    return out


def e_frags():
    out = []
    for p, (ks, n, a) in enumerate(e_order()):
        def mf(d, ks=ks, n=n):
            r = []
            for u in range(2):
                c = vr(aZ2 + (2 * n + u) * 4, 4)
                r.append(f'{M16} {c}, {vr(d, 4)}, {ar(8 * (ks % 32) + 4 * u, 4)}, ' + (c if ks else vr(NM + 4 * u, 4)))
            return r
        out.append((lambda d, a=a: [f'ds_read_b128 {vr(d, 4)}, v{LB[a >> 16]} offset:{a & 65535}'], mf, [T('sf', ND + p // 28)],
                    [T('sr', ND + p // 28)]))
    return out


def phase_c(m):
    k, P, o = m.k, m.P, m.o
    ct = dict(lead=14, bar=24, d1=(200, 228), pre=16)
    ct.update(o.get('c_t', {}))
    P.raw('s_barrier', dep=[T('xrd'), T('wod')])
    P.lines(f'''s_add_u32 s3, s{sW}, 124
    s_lshl_b32 m0, s3, 10
    s_lshl_b32 s{sa}, s3, 14
    v_subrev_u32 v{rbC}, s{sRg}, v{B.vWiR}
    s_mul_i32 s{sRg}, s{sW}, 7168''')
    P.raw(f'buffer_load_dwordx4 v{B.vWo}, {Q(qWO)}, s{sa} offen lds', sig=[T('wod2')])
    P.lines(f'''s_lshl_b32 s{t6}, s{sC}, 19
    s_add_u32 s{t6}, s{t6}, s{sRg}
    s_add_u32 s{t6}, s{t6}, {WIN}
    s_mov_b32 s{sb}, s{t6}
    s_lshr_b32 s{t5}, s{sRg}, 1
    s_min_u32 s{t5}, s{t5}, 10240''')
    if o['upto'] >= 'D':
        stage_dma(P.raw, 0)
    B.check(m)
    for i in range(4):
        x = B.XR + 4 * i
        P.lines(f'v_permlane16_swap_b32 v{x}, v{x + 2}\nv_permlane16_swap_b32 v{x + 1}, v{x + 3}')
    P.lines('\n'.join(f'v_xor_b32 v{rbC + n}, {32 * n}, v{rbC}' for n in range(1, 4)))
    P.lines('\n'.join(f'v_add_u32 v{rbC + 4 + n}, 0x10000, v{rbC + n}' for n in range(4)))
    for i in range(4):
        unpack(P.raw, accC + 8 * i, B.XR + 4 * i)
    frs = []
    for ks in range(32):
        for n in range(4):
            frs.append(tr_frag(rbC, ks * 4096, accC, ks, n, [T('cb')] if ks >= ct['bar'] else [], [T('cr1' if ks >= ct['bar'] else 'cr0')]))
    pre_reads(m, frs[:ct['pre']])
    P.lines(f'''v_add_u32 v{L16b}, 0x10000, v{L16}
    v_add_u32 v{L16c}, 0x20000, v{L16}
    s_mov_b32 s{mk1}, 0x22222222
    s_mov_b32 s{mk1 + 1}, 0x22222222
    s_mov_b32 s{mk2}, 0x44444444
    s_mov_b32 s{mk2 + 1}, 0x44444444
    s_mov_b32 s{mk3}, 0x88888888
    s_mov_b32 s{mk3 + 1}, 0x88888888
    v_lshrrev_b32 v{SQ}, 4, v{vL}
    v_bfe_u32 v{SQ + 1}, v{vL}, 2, 2
    v_cmp_eq_u32 vcc, v{SQ}, v{SQ + 1}
    v_and_b32 v{SQ}, 0xf0, v{L16}
    v_cndmask_b32 v{vS2}, 2.0, v{SQ}, vcc
    s_lshl_b32 s{sP}, s{sT}, 16
    s_lshl_b32 s3, s{sC}, 12
    s_add_u32 s{t0}, s{sP}, s3
    s_add_u32 s{t0}, s{t0}, {HH}
    s_add_u32 s{sP}, s{sP}, {OO}
    s_lshl_b32 s{t1}, s{sT}, 12
    s_add_u32 s{t1}, s{t1}, {ST2}
    s_lshl_b32 s3, s{sC}, 8
    s_add_u32 s{t2}, s{t1}, s3''')
    m.mark('.Lwo')
    m.visit('.Lwz' if o['upto'] >= 'D' else '.Lend')
    P.raw(m.arrive(B.vOA, H_O0), dep=[T('ost')])
    m.stamp(None, 'oarr')
    m.poll_inline(B.vOP, H_O0, two=True)
    m.stamp(None, 'ohop')
    if o.get('fx', 0) & 4:
        P.lines(f's_lshl_b32 s{sP}, s{sW}, 16\ns_add_u32 s{sP}, s{sP}, {OO}')
    frag_loads(P.raw, 0, ct['lead'])
    S = Seg('C')
    S.spread(frag_loads(S.add, ct['lead'], 64), 0, 4 * (64 - ct['lead']), 1)
    for p in range(0, 128, 2):
        if p == 4 * ct['bar']:
            S.add('s_barrier', dep=[T('cr0'), T('wod2')], sig=[T('cb')])
            if o['upto'] >= 'D':
                S.spread(stage_dma(S.add, 1, [T('cb')]) + (stage_dma(S.add, 2, [T('cb')]) if o.get('n1', 1) == 2 else []), *ct['d1'], 1)
        m.pair(S, frs[p:p + 2], pre=p < ct['pre'])
    m.stamp(S, 'c')
    S.add('s_barrier', dep=[T('cr1'), T('sd', 0)], sig=[T('sf', 0)], by=250)
    own = o.get('own', 14)
    cvt = lambda b: [f'v_cvt_pk_bf16_f32 v{b + e}, v{b + 2 * e}, v{b + 2 * e + 1}' for e in range(4)]
    hst = lambda i: f'buffer_store_dwordx4 {vr(accC + 8 * i, 4)}, v{L16}, {Q(qS)}, s{t0} offen offset:{1024 * i} sc1'
    for u in range(2):
        S.lines('\n'.join(cvt(accC + 8 * u)))
        S.add(hst(u), sig=[T('hst')])
    P.seg(S)
    acw = [f'v_accvgpr_write_b32 a{i}, v{accC + (i >> 2) * 8 + (i & 3)}' for i in range(16)] if own else []
    for mm in range(2):
        for u in range(2):
            h = vr(accC + (mm * 2 + u) * 8, 4)
            s_, q_ = vr(SQ + 8 * u, 4), vr(SQ + 8 * u + 4, 4)
            c = cvt(accC + 16 + 8 * u) if mm == 0 else acw[4 * u:4 * u + 4]
            P.raw(f'{M16} {q_}, {h}, {h}, ' + (q_ if mm else '0'))
            for x in c[:2]:
                P.raw(x)
            P.raw(f'{M16} {s_}, {vr(ONE4, 4)}, {h}, ' + (s_ if mm else '0'))
            for x in c[2:]:
                P.raw(x)
            if mm == 0:
                P.raw(hst(2 + u), sig=[T('hst')])
    if own and o['upto'] >= 'D':
        pre_reads(m, d_frags(own)[:4])
    for u in range(2):
        for e, mk in enumerate((mk1, mk2, mk3)):
            d, q_ = SQ + 1 + 2 * u, SQ + 8 * u + 4
            P.raw(f'v_cndmask_b32 v{d}, v{d if e else q_}, v{q_ + 1 + e}, {sr(mk, 2)}')
    P.raw(f'v_mov_b32 v{SQ + 2}, v{SQ + 8}')
    P.raw(f'buffer_store_dwordx4 {vr(SQ, 4)}, v{vS2}, {Q(qS)}, s{t2} offen sc1', sig=[T('hst')])
    for x in acw[8:]:
        P.raw(x)
    m.stamp(None, 'hst')
    if o['upto'] < 'D':
        P.raw(m.arrive(vRC, H_H), dep=[T('hst')])


def gelu(add, a, c0, c1, sv, t):
    return [add(f'v_mul_f32 v{t}, v{a}, v{a}'), add(f'v_fma_f32 v{t}, v{t}, v{c1}, v{c0}'), add(f'v_mul_f32 v{t}, v{t}, v{a}'),
            add(f'v_exp_f32 v{t}, v{t}', lat=1), add(f'v_fma_f32 v{t}, v{t}, v{sv}, v{sv}'), add(f'v_rcp_f32 v{t}, v{t}', lat=1),
            add(f'v_mul_f32 v{a}, v{a}, v{t}')]


def gelu4(add, a, u, t):
    sel = lambda n: f'op_sel:[0,{",".join([str(u)] * n)}] op_sel_hi:[1,{",".join([str(u)] * n)}]'
    h = [(vr(a + 2 * i, 2), vr(t + 2 * i, 2)) for i in range(2)]
    for x, y in h:
        add(f'v_pk_mul_f32 {y}, {x}, {x}')
    for x, y in h:
        add(f'v_pk_fma_f32 {y}, {y}, {vr(K1 + 2, 2)}, {vr(K1, 2)} {sel(2)}')
    for x, y in h:
        add(f'v_pk_mul_f32 {y}, {y}, {x}')
    for e in range(4):
        add(f'v_exp_f32 v{t + e}, v{t + e}')
    for x, y in h:
        add(f'v_pk_fma_f32 {y}, {y}, {vr(K1 + 4, 2)}, {vr(K1 + 4, 2)} {sel(2)}')
    for e in range(4):
        add(f'v_rcp_f32 v{t + e}, v{t + e}')
    for x, y in h:
        add(f'v_pk_mul_f32 {x}, {x}, {y}')


def interleave(chains, w):
    out = []
    for i in range(0, len(chains), w):
        grp = chains[i:i + w]
        for j in range(max(len(c) for c in grp)):
            out += [c[j] for c in grp if j < len(c)]
    return out


def phase_de(m):
    k, P, o = m.k, m.P, m.o
    dt = dict(lead=16, pre=16, st2=96, stat=(170, 235), d5=150, dstep=40, ga=500, gb=560, arr3=70, poll3=30, chk3=56, ld3=50, nrm=50, arrz=70,
              pollz=26, wx=7, wv=5, hole=6, sp=((480, 730, 18), (730, 920, 38)), win1=6, win2=8, esp=(28, 660), eg=(30, 500))
    dt.update(w5=0, pw=0, ag=0, sp0=0, ph=7)
    if o.get('own', 14):
        dt.update(stat=(156, 220), ga=472, gb=532, d5=140, pw=8, n0=14, g0=3, win0=0, win1=4, win2=7, sp1=4, wst=2, eg=(86, 500), w5=1, ag=24, ph=0, sp=((370, 430, 4), (440, 545, 10), (545, 700, 24), (700, 864, 22)))
    dt.update(o.get('d_t', {}))
    OPT.update(o)
    own = o.get('own', 14)
    frs = d_frags(own)
    p0 = 2 * own
    if own:
        X = Seg('D0')
        X.spread([x for s in range(o.get('n1', 1) + 1, 5) for x in stage_dma(X.add, s)], dt.get('x0', 0), 4 * own - 2, 1)
    else:
        X = P
        stage_dma(P.raw, 3)
        stage_dma(P.raw, 4)
    X.lines(f'''s_lshl_b32 s{sH}, s{sT}, 16
    s_add_u32 s{sH}, s{sH}, {HH}
    s_lshl_b32 s3, s{sW}, 10
    s_add_u32 s3, s3, {SCR}
    v_lshrrev_b32 v{vSr}, 4, v{vL}
    v_lshl_add_u32 v{vSr}, v{vSr}, 4, s3
    v_and_b32 v{vSw}, 15, v{vL}
    v_lshl_add_u32 v{vSw}, v{vSw}, 2, s3''')
    X.lines(f'''v_lshrrev_b32 v{GT}, 5, v{vL}
    v_lshl_add_u32 v{vSw}, v{GT}, 6, v{vSw}
    v_and_b32 v{GT + 1}, 3, v{vL}
    v_cmp_eq_u32 vcc, 0, v{GT + 1}
    v_lshlrev_b32 v{GT + 1}, 2, v{vL}
    v_cndmask_b32 v{vS3}, 2.0, v{GT + 1}, vcc
    v_and_b32 v{vYs}, 0x1f0, v{L16}
    v_lshl_add_u32 v{vYs}, v{GT}, 10, v{vYs}
    s_lshl_b32 s3, s{sT}, 5
    v_add_lshl_u32 v{vBi}, v{vTau}, s3, 1''')
    X.lines(f'''s_lshl_b32 s{sM}, s{sW}, 10
    s_lshl_b32 s3, s{sC}, 18
    s_add_u32 s3, s3, s{sM}
    s_add_u32 s3, s3, {WUP}
    v_add_u32 v{vWu}, s3, v{L16}''')
    if own:
        for p in range(0, p0, 2):
            m.pair(X, frs[p:p + 2], pre=p < 4)
        if dt['ag']:
            X.add(m.arrive(vRC, H_H), dep=[T('hst')], at=dt['ag'], by=dt['ag'])
            m.stamp(X, 'harr', at=dt['ag'], by=dt['ag'] + 1)
        P.seg(X)
        if p0 == 28:
            P.raw('s_barrier', dep=[T('sd', 1), T('sr', 0)], sig=[T('sf', 1)])
    npre = min(dt['pre'], 28 - p0 % 28)
    pre_reads(m, frs[p0:p0 + npre])
    if not dt['ag']:
        m.visit('.Lwy')
        P.raw(m.arrive(vRC, H_H), dep=[T('hst')])
        m.stamp(None, 'harr')
    fill = []
    rec = lambda t, **kw: fill.append((t, kw))
    if p0 == 28 and dt['w5']:
        stage_dma(rec, 5)
    if dt['hole'] == 0:
        wu_dma(rec, 0, 4)
    issue, test = m.poll_txt(vRC, H_H)
    ld = [i for i, x in enumerate(fill) if x[0].startswith('buffer')] + [len(fill)]
    fill.insert(ld[min(dt['ph'], len(ld) - 1)], (issue, {}))
    for a, kw in fill:
        P.raw(a, **kw)
    if dt['ag']:
        m.visit('.Lwy')
    slow, back = k.label('slow'), k.label('back')
    P.raw(f'{test}\ns_cbranch_scc0 {slow}\n{back}:')
    m.slow.append(m.spin(slow, back, issue, test) + f'\ns_branch {back}')
    m.stamp(None, 'hhop')
    hf, h0 = (h_loads, 4) if own else (frag_loads, 0)
    hf(P.raw, h0, h0 + dt['lead'])
    S = Seg('D')
    hl = hf(S.add, h0 + dt['lead'], 64)
    S.spread(hl, 0, 4 * len(hl), 1)
    S.spread([S.add(f'buffer_load_dwordx4 {vr(ST + 4 * i, 4)}, v{L16}, {Q(qS)}, s{t1} offen offset:{1024 * i} sc1') for i in range(4)],
             dt['st2'], dt['st2'] + 16, 1)
    S.add(f'buffer_load_ushort v{vBi + 1}, v{vBi}, {Q(qB)}, 0 offen offset:8', at=300, by=310)
    S.add(f'buffer_load_ushort v{vBi}, v{vBi}, {Q(qB)}, 0 offen', at=304, by=314)
    ops = stats(S.add, D, ST)
    ops += S.lines(f'''v_mul_f32 v{K1}, {hexf(-KG)}, v{ST + 1}
    v_mul_f32 v{K1 + 4}, v{ST + 2}, v{ST + 1}
    v_mul_f32 v{K1 + 2}, v{ST + 1}, v{ST + 1}
    v_mul_f32 v{K1 + 2}, {hexf(0.044715)}, v{K1 + 2}
    v_mul_f32 v{K1 + 2}, v{K1 + 2}, v{K1}
    v_cvt_pk_bf16_f32 v{NM}, -v{ST}, -v{ST}''')
    wr = [S.add(f'ds_write_b32 v{vSw}, v{K1 + 2 * v} offset:{128 * v}') for v in range(3)]
    ops += wr
    for v in range(3):
        for u in range(2):
            ops.append(S.add(f'ds_read_b128 {vr(K2 + 8 * v + 4 * u, 4)}, v{vSr} offset:{128 * v + 64 * u}', after=(wr[v], 0)))
    for a, b in ((NM, NM + 4), (K1, K1 + 1), (K1 + 2, K1 + 3), (K1 + 4, K1 + 5)):
        ops.append(S.add(f'v_mov_b32 v{b}, v{a}', lat=1))
        ops.append(S.add(f'v_permlane32_swap_b32 v{a}, v{b}'))
    ops += [S.add(f'v_mov_b32 v{NM + 4 * u + e}, v{NM + 4 * u}') for u in range(2) for e in range(1, 4)]
    S.spread(ops, *dt['stat'], 4)
    nt = [0]

    def z2_gelu(tiles):
        chains = []
        for n in tiles:
            for u in range(2):
                for i in range(4):
                    a, e = aZ2 + (2 * n + u) * 4 + i, 4 * u + i
                    c = []
                    gelu(lambda x, **kw: c.append((x, kw)), a, K2 + e, K2 + 8 + e, K2 + 16 + e, GT + nt[0] % 4)
                    nt[0] += 1
                    s_, q_ = ST + 4 * i + 2 * u, ST + 4 * i + 2 * u + 1
                    if n == 1:
                        c.append((f'v_add_f32 v{s_}, v{a}, v{a - 8}', {}))
                    elif n:
                        c.append((f'v_add_f32 v{s_}, v{s_}, v{a}', {}))
                    c.append((f'v_fma_f32 v{q_}, v{a}, v{a}, v{q_}' if n else f'v_mul_f32 v{q_}, v{a}, v{a}', {}))
                    chains.append(c)
        return [S.add(x, **kw) for x, kw in interleave(chains, 2)]

    spq = []
    for a, b, n in dt['sp']:
        spq += [int(a + (b - a) * i / n) for i in range(n)]
    nsp = 0
    S.lines(f's_lshl_b32 s{sSp}, s{sT}, 4\ns_add_u32 s{sSp}, s{sSp}, {0 if OPT.get("esw", 1) else f"s{sR}"}\ns_lshl_b32 s{sSp}, s{sSp}, 13\ns_add_u32 s{sSp}, s{sSp}, {WSP}')
    e0, e1 = (p0 + 124, p0 + 217) if own else (132, 231)
    for p in range(p0, 462, 2):
        s, gp = p // 28, 2 * (p - p0)
        if p % 28 == 0 and s:
            if p > p0:
                S.add('s_barrier', dep=[T('sd', s), T('sr', s - 1)], sig=[T('sf', s)])
            if s + 4 < ND and (p > p0 or not dt['w5']):
                g0 = max(gp - 24, dt['d5'] + dt['dstep'] * (s - 1))
                S.spread(stage_dma(S.add, s + 4, [T('sf', s)]), g0, g0 + (dt['dstep'] if g0 > gp - 24 else 52), 2)
            if s == dt['hole']:
                S.spread(wu_dma(S.add, 0, 4), gp + 28, gp + 32, 2)
            if s in o.get('d_st', ()):
                m.stamp(S, f'd{s}')
        m.pair(S, frs[p:p + 2], pre=p < p0 + npre)
        if p + 2 == e0:
            S.ramp(z2_gelu([0, 1, 2, 3]), gp + 10, dt['ga'])
        if p + 1 == e1:
            gb = dt['gb']
            S.ramp(z2_gelu([4, 5, 6]), max(dt['ga'], gp + 8), gb)
            ops = []
            for i in range(2):
                for ab, bm in ((0, 0x3), (8, 0xc)):
                    ops += [S.add(f'v_add_f32_dpp v{ST + 4 * i + e}, v{ST + 4 * i + ab + e}, v{ST + 4 * i + ab + e} row_ror:8 row_mask:0xf bank_mask:{hex(bm)}')
                            for e in range(4)]
            for ab, bm, sh in ((0, 0x5, 'row_shl:4'), (4, 0xa, 'row_shr:4')):
                ops += [S.add(f'v_add_f32_dpp v{ST + e}, v{ST + ab + e}, v{ST + ab + e} {sh} row_mask:0xf bank_mask:{hex(bm)}') for e in range(4)]
            for qp in ('[1,0,3,2]', '[2,3,0,1]'):
                ops += [S.add(f'v_add_f32_dpp v{ST + e}, v{ST + e}, v{ST + e} quad_perm:{qp} row_mask:0xf bank_mask:0xf') for e in range(4)]
            S.lines(f's_add_u32 s{t1}, s{t1}, {ST3 - ST2}\ns_add_u32 s{t2}, s{t2}, {ST3 - ST2}', at=400)
            ops.append(S.add(f'buffer_store_dwordx4 {vr(ST, 4)}, v{vS3}, {Q(qS)}, s{t2} offen sc1', sig=[T('st3')], lat=0))
            S.ramp(ops, gb, gb + 8)
            g = gb + 8 + dt['arr3']
            S.add(m.arrive(vRC, H_ST3), dep=[T('st3')], at=g, by=g)
            g += dt['poll3']
            m.poll_hidden(S, vRC, H_ST3, g, g + dt['chk3'], T('ok', H_ST3))
            g += dt['chk3']
            for i in range(4):
                S.add(f'buffer_load_dwordx4 {vr(ST + 4 * i, 4)}, v{L16}, {Q(qS)}, s{t1} offen offset:{1024 * i} sc1', dep=[T('ok', H_ST3)],
                      by=g + 1 + i, lat=dt['ld3'])
            g += dt['ld3']
            ops = stats(S.add, FH, ST)
            ops.append(S.add(f'v_mul_f32 v{ST}, -v{ST}, v{ST + 1}'))
            wr = [S.add(f'ds_write_b32 v{vSw}, v{ST + v} offset:{128 * v}') for v in range(2)]
            ops += wr
            for u in range(2):
                for v in range(2):
                    ops.append(S.add(f'ds_read_b128 {vr(K2 + 8 * v + 4 * u, 4)}, v{vSr} offset:{128 * v + 64 * u}', after=(wr[v], 0)))
            S.ramp(ops, g, g + 12)
            S.lines(f'''s_add_u32 s{sZ}, s{t6}, {Z2 - WIN}
            s_add_u32 s{sZ + 1}, s{sZ}, 4096
            s_mul_i32 s{t3}, s{sR}, 28672
            s_add_u32 s{t3}, s{t3}, s{sZ}
            s_add_u32 s{t4}, s{t3}, 4096
            v_add_u32 v{GT}, s{sRg}, v{L16}''', at=g - 50)
            ops, zw = [], []
            for n in range(7):
                b = aZ2 + 8 * n
                ops += [S.add(f'v_fma_f32 v{b + e}, v{b + e}, v{K2 + 8 + e}, v{K2 + e}') for e in range(8)]
                ops += [S.add(f'v_cvt_pk_bf16_f32 v{b + e}, v{b + 2 * e}, v{b + 2 * e + 1}') for e in range(4)]
                ops.append(S.add(f'buffer_store_dwordx4 {vr(b, 4)}, v{L16}, {Q(qS)}, s{(t3, t4)[n >> 2]} offen offset:{1024 * (n & 3)} sc1',
                                 sig=[T('z2st')], lat=0))
                zw.append((f'ds_write_b128 v{GT}, {vr(b, 4)} offset:{slot_of(ND) + 1024 * n}', dict(sig=[T('sd', ND)])))
            S.ramp(ops, g + 20, g + dt['nrm'])
            g += dt['nrm'] + dt['arrz']
            gz = g
            if dt['win0'] < 0:
                S.spread([S.add(x, **kw) for x, kw in zw], g - dt['arrz'] + 8, g - dt['arrz'] + 36, 2)
                S.add('s_barrier', dep=[T('z2st'), T('sd', ND)], sig=[T('z2all'), T('sf', ND)], at=g, by=g)
            else:
                S.add('s_barrier', dep=[T('z2st')], sig=[T('z2all')], at=g, by=g)
            S.add(m.arrive(vCA, H_Z2), dep=[T('z2all')], by=g)
            print('z2 arrival at gap', g)
        done = max(2, (p + 2 - 231) // 7)
        while nsp < min(2 * done, len(spq), 64):
            x = sp_loads(S.add, nsp, nsp + 1)[0]
            x.at, x.by = spq[nsp], spq[nsp] + 2
            nsp += 1
    m.stamp(S, 'd')
    issue, test = m.poll_txt(vCP, H_Z2)
    early = gz + dt['pollz'] < 920 - 2 * p0
    if early:
        S.add(issue, at=gz + dt['pollz'], by=gz + dt['pollz'] + 2)
    P.seg(S)
    m.mark('.Lwz')
    quads = [(n, u) for n in range(7) for u in range(2)]
    nq = [0]

    def z1_gelu(X, cnt, g0, g1):
        chains = []
        for n, u in quads[nq[0]:nq[0] + cnt]:
            for i in range(4):
                c = []
                gelu(lambda x, **kw: c.append((x, kw)), aZ1 + (2 * n + u) * 4 + i, K1 + u, K1 + 2 + u, K1 + 4 + u, GT + nt[0] % 4)
                nt[0] += 1
                chains.append(c)
        nq[0] += cnt
        X.ramp([X.add(x, **kw) for x, kw in interleave(chains, 2)], g0, g1)

    def win(cnt, fill=()):
        fill = list(fill)
        txt = []
        for n, u in quads[nq[0]:nq[0] + cnt]:
            gelu4(txt.append, aZ1 + (2 * n + u) * 4, u, GT)
        nq[0] += cnt
        step = max(1, len(txt) // max(1, len(fill)))
        for i, t in enumerate(txt):
            if fill and i % step == 0:
                a, kw = fill.pop(0)
                P.raw(a, **kw)
            P.raw(t)
        for a, kw in fill:
            P.raw(a, **kw)
    if dt['win0'] >= 0:
        for x, kw in zw:
            P.raw(x, **kw)
    P.lines(f'v_lshlrev_b32 v{NM}, 16, v{vBi}\nv_lshlrev_b32 v{NM + 4}, 16, v{vBi + 1}')
    P.lines('\n'.join(f'v_mov_b32 v{NM + 4 * u + e}, v{NM + 4 * u}' for u in range(2) for e in range(1, 4)))
    fill = []
    rec = lambda t, **kw: fill.append((t, kw))
    sp_loads(rec, nsp, 64)
    for i in range(4):
        rec(f'buffer_load_dwordx4 {vr(HR + 4 * i, 4)}, v{L16}, {Q(qS)}, s{t0} offen offset:{1024 * i} sc1')
    wu_dma(rec, 4, 4 + dt['wx'])
    for i in range(dt['wv']):
        wu_reg(rec, 55 - i, vr(VP[i], 4))
    isld = lambda x: x[0].startswith('buffer')
    ld = [i for i, x in enumerate(fill) if isld(x)] + [len(fill)]
    if not early:
        fill.insert(ld[min(dt['pw'], len(ld) - 1)], (issue, {}))
    frs = e_frags()
    if dt['win0'] >= 0:
        n = ld[2 * dt['win0']]
        win(dt['win0'], fill[:n])
        del fill[:n]
        P.raw('s_barrier', dep=[T('sd', ND)], sig=[T('sf', ND)])
    X = Seg('E0')
    ops = []
    while len(ops) < dt['n0']:
        a, kw = fill.pop(0)
        x = X.add(a, **kw)
        if 'buffer' in a:
            ops.append(x)
    X.spread(ops, 0, 54, 1)
    z1_gelu(X, dt['g0'], 2, 54)
    for p in range(0, 28, 2):
        m.pair(X, frs[p:p + 2])
    P.seg(X)
    P.raw('s_barrier', dep=[T('sr', ND - 1), T('sr', ND)])
    sp_loads(rec, 64, 64 + dt['sp1'])
    win(dt['win1'], fill)
    m.visit('.Lend')
    slow, back = k.label('slow'), k.label('back')
    P.raw(f'{test}\ns_cbranch_scc0 {slow}\n{back}:')
    m.slow.append(m.spin(slow, back, issue, test) + f'\ns_branch {back}')
    m.stamp(None, 'zhop')
    fill = []
    rec = lambda t, **kw: fill.append((t, kw))
    stage_dma(P.raw, ND + 1)
    for s in range(ND + 2, ND + 1 + dt.get('wst', 3)):
        stage_dma(rec, s)
    win(dt['win2'], fill)
    P.raw('s_barrier', dep=[T('sd', ND + 1)], sig=[T('sf', ND + 1)])
    m.stamp(None, 'e0')
    S = Seg('E')
    late = [(s, stage_dma(S.add, s)) for s in range(ND + 1 + dt.get('wst', 3), ND + 5)]
    z1_gelu(S, 14, *dt['eg'])
    phase_ef(m, S, frs, late, dt)


def phase_ef(m, S, frs, late, dt):
    k, P, o = m.k, m.P, m.o
    et = dict(step=4.1, lat=50, wl=60, zs=0, ep=(26, 18, 18), arr=(50, 50, 50), poll=(75, 80, 115), chk=(45, 45, 45), dw=60, nreg=15,
              set=(700, 800))
    et.update(o.get('e_t', {}))
    s0 = ND + NE
    nreg = et['nreg']
    na = nreg - len(VP)
    R0 = (na + 1) // 2
    NR = 32 - R0
    reg_of = lambda q: vr(VP[55 - q], 4) if 55 - q < len(VP) else ar(4 * (q - 56 + nreg), 4)
    jobs, fixed = [], []
    L = et['lat']

    def job(ops, e, d, de=0, dd=0):
        for i, x in enumerate(ops):
            jobs.append((e + de * i, d + dd * i, len(jobs), x))

    def plan():
        t, left, late, idle = 56.0, sorted(jobs, key=lambda j: (j[1], j[2])), {}, {}
        fx = sorted(fixed)
        while left:
            if fx and fx[0] < t + et['step']:
                t = max(t, fx.pop(0)) + et['step']
                continue
            j = next((j for j in left if j[0] <= t), None)
            if j is None:
                t = int(t) + 1
                idle[t // 50 * 50] = idle.get(t // 50 * 50, 0) + 1
                continue
            left.remove(j)
            d = max(j[0], j[1])
            if t > d:
                late[int(t) // 50 * 50] = late.get(int(t) // 50 * 50, 0) + int(t - d)
                t = d
            j[3].at, j[3].by = int(t), int(t) + 1
            t += et['step']
        print('minimum: stall', late, sum(late.values()), 'idle', idle)

    fown = {0: aZ2 + 32, 24: aZ2 + 16, 40: aZ2} if o.get('fown', 1) else {}
    sLin, sQ0, sOwn = mk1 + 1, mk3, mk3 + 1

    def y_load(i, e, tok):
        q = i >> 1
        if fown:
            if q in fown:
                if i & 1:
                    S.add(f's_add_u32 s{sQ0}, s{t1}, {2048 * q}')
                    S.add(f's_mov_b32 s{sLin}, s{sQ0}')
                return
            if not i & 1:
                q0 = max(x for x in fown if x <= q)
                S.add(f's_add_u32 s{sLin}, s{sLin}, 2048')
                S.add(f's_cmp_eq_u32 s{sC if q0 else sOwn}, {q - q0}\ns_cselect_b32 s{sP}, s{sQ0}, s{sLin}')
            job([S.add(f'buffer_load_dwordx4 {ar(8 * R0 + 4 * (i % (2 * NR)), 4)}, v{L16}, {Q(qS)}, s{sP} offen offset:{1024 * (i & 1)} sc1',
                       dep=[tok])], e, 896 + 8 * q - L)
            return
        job([S.add(f'buffer_load_dwordx4 {ar(8 * R0 + 4 * (i % (2 * NR)), 4)}, v{L16}, {Q(qS)}, s{sP} offen offset:{1024 * (i & 3)} sc1',
                   dep=[tok])], e, 896 + 8 * (i >> 1) - L)
        if i & 3 == 3:
            S.add(f's_add_u32 s{sP}, s{sP}, 4096')

    def epilogue(mms, g0, g1, tok):
        ops = []
        for mm in mms:
            tl = (2 * mm, 2 * mm + 1) if mm < 3 else (6,)
            for u in range(2):
                for n in tl:
                    b = (2 * n + u) * 4
                    ops += [S.add(f'v_mul_f32 v{aZ1 + b + e}, v{aZ1 + b + e}, v{aZ2 + b + e}') for e in range(4)]
                if mm < 3:
                    d = aZ2 + (4 * mm + u) * 4
                    for i, n in enumerate(tl):
                        b = aZ1 + (2 * n + u) * 4
                        ops += [S.add(f'v_cvt_pk_bf16_f32 v{d + 2 * i + e}, v{b + 2 * e}, v{b + 2 * e + 1}') for e in range(2)]
                    ops.append(S.add(f'buffer_store_dwordx4 {vr(d, 4)}, v{L16}, {Q(qS)}, s{(t5, t3, t4)[mm]} offen '
                                     f'offset:{1024 * u} sc1', sig=[tok], lat=0))
            if mm == 3:
                d, b = aZ2 + 48, aZ1 + 48
                ops += [S.add(f'v_cvt_pk_bf16_f32 v{d + e}, v{b + 2 * e}, v{b + 2 * e + 1}', lat=1) for e in range(4)]
                ops += S.lines(f'v_permlane32_swap_b32 v{d}, v{d + 2}\nv_permlane32_swap_b32 v{d + 1}, v{d + 3}')
                ops.append(S.add(f'buffer_store_dwordx4 {vr(d, 4)}, v{vYs}, {Q(qS)}, s{t2} offen sc1', sig=[tok], lat=0))
        S.ramp(ops, g0, g1)
        fixed.extend(x.by for x in ops if x.q == 'vm')
    t = vOut + 1
    ops = S.lines(f'''v_add_u32 v{vDw}, s{sM}, v{L16}
    v_add_u32 v{vDw + 1}, {FG[5][1]}, v{vDw}
    s_lshl_b32 s{t1}, s{sT}, 17
    s_add_u32 s{t1}, s{t1}, {YY}
    s_lshl_b32 s{t3}, s{sC}, 11
    s_add_u32 s{t3}, s{t3}, s{t1}
    s_add_u32 s{t3}, s{t3}, {24 * 2048}
    s_add_u32 s{t5}, s{t3}, {16 * 2048}
    s_lshr_b32 s{t2}, s{sC}, 1
    s_mul_i32 s{t2}, s{t2}, {3 * 2048}
    s_add_u32 s{t2}, s{t2}, s{t1}
    s_and_b32 s3, s{sC}, 1
    s_lshl_b32 s{t4}, s3, 12
    s_add_u32 s{t4}, s{t4}, s{t2}
    s_lshl_b32 s3, s3, 9
    s_add_u32 s{t2}, s{t2}, s3
    s_add_u32 s{t2}, s{t2}, 2048
    v_bfe_u32 v{vOut}, v{vL}, 4, 1
    v_lshlrev_b32 v{vOut}, 5, v{vOut}
    v_lshrrev_b32 v{t}, 5, v{vL}
    v_lshl_add_u32 v{vOut}, v{t}, 4, v{vOut}
    s_lshl_b32 s3, s{sT}, 5
    v_add_lshl_u32 v{t}, v{vTau}, s3, 11
    s_lshl_b32 s3, s{sC}, 7
    v_add3_u32 v{vOut}, v{vOut}, v{t}, s3
    s_mul_i32 s{sOwn}, s{sC}, 3
    s_add_u32 s{sOwn}, s{sOwn}, 1
    s_lshr_b32 s{sOwn}, s{sOwn}, 1
    s_movk_i32 s{sM0}, 8192''')
    S.spread(ops, 420, 600, 4)
    for s, x in late:
        job(x, 0, 56 * (s - ND) - 24 - L)
    for q in range(56):
        g, a = f_group(q)
        for n in range(4):
            frs.append(tr_frag(rbF, a, accF, R0 + q % NR, n, [T('sf', s0 + g)], [T('sr', s0 + g)], fown.get(q)))
    start = [28 * e for e in range(NE)] + [448 + 4 * q for q, a in FG]
    bar = lambda s: 2 * start[s - ND] - 24
    rounds = ((320, (2, 3), 0), (448 - 2 * MS, (1,), 48), (448, (0,), 80))
    ok = [2 * pe + 5 + et['ep'][i] + et['arr'][i] + et['poll'][i] + et['chk'][i] for i, (pe, mms, y0) in enumerate(rounds)]
    wdl = lambda q: bar(s0 + f_group(q)[0]) - et['wl']
    wat = lambda q: bar(s0 + f_group(q)[0] - 4) + et['dw']
    nw = ny = 0
    order = e_order()
    first = [min(i for i, x in enumerate(order) if x[0] == ks) for ks in range(64)]
    lastu = [max(i for i, x in enumerate(order) if x[0] == ks) for ks in range(64)]
    for p in range(28, 672, 2):
        if p in start and p > 28:
            s = ND + start.index(p)
            S.add('s_barrier', dep=[T('sd', s), T('sr', s - 1)], sig=[T('sf', s)])
            g = bar(s)
            if s + 3 < s0:
                job(stage_dma(S.add, s + 3, [T('sf', s)]), g, bar(s + 3) - L - et['zs'])
            if s + 4 == s0 and dt['wx'] < 7:
                job(wu_dma(S.add, 4 + dt['wx'], 11), 0, wdl(10))
            if s0 < s + 4 < s0 + 7:
                q0, q1 = FG[s + 4 - s0][0], FG[s + 5 - s0][0]
                qm = min(max(q0, 56 - nreg), q1)
                job(wu_dma(S.add, q0, qm, [T('sf', s)]), g, wdl(q0))
                S.spread([S.add(f'ds_write_b128 v{vDw + (a >= FG[5][1])}, {reg_of(q)} offset:{a % FG[5][1]}', dep=[T('sf', s)],
                                sig=[T('sd', s + 4)]) for q in range(qm, q1) for a in f_group(q)[1:]], wat(q0), wat(q0) + 4 * (q1 - qm), 2)
            if s in o.get('d_st', ()):
                m.stamp(S, f'e{s - ND}' if s < s0 else f'f{s - s0}')
        if p == 448:
            m.mark_seg(S, '.Lwy')
        m.pair(S, frs[p:p + 2])
        if p == 36:
            for i in range(len(VP) - 1, dt['wv'] - 1, -1):
                job([wu_reg(S.add, 55 - i, vr(VP[i], 4))], 76, 640)
        for ks in range(p // 7 if p > 28 else dt['sp1'] // 2, (p + 2) // 7):
            if ks < 32:
                job(sp_loads(S.add, 64 + 2 * ks, 66 + 2 * ks), 14 * ks + 14, 2 * first[32 + ks] - L)
        for i, (pe, mms, y0) in enumerate(rounds):
            if p + 2 == pe:
                g = 2 * pe + 4
                epilogue(mms, g, g + et['ep'][i], T('y', i))
                g += et['ep'][i] + et['arr'][i]
                S.add(m.arrive(vRC, H_Y + i), dep=[T('y', i)], at=g, by=g)
                fixed.extend((g, g + et['poll'][i]))
                g += et['poll'][i]
                m.poll_hidden(S, vRC, H_Y + i, g, g + et['chk'][i], T('ok', H_Y + i))
                ops = []
                for j in ((1, 2, 3), (0,), ())[i]:
                    unpack(lambda x: ops.append(S.add(x)), accF + 8 * j, HR + 4 * j)
                if i == 0:
                    S.add(f's_mov_b32 s{sP}, s{t1}')
                    ops += S.lines(f'''v_lshrrev_b32 v{rbF + 1}, 2, v{vL}
                    v_lshlrev_b32 v{rbF}, 7, v{rbF + 1}
                    v_bfe_u32 v{rbF + 1}, v{vL}, 3, 2
                    v_lshl_add_u32 v{rbF}, v{rbF + 1}, 5, v{rbF}
                    v_and_b32 v{rbF + 1}, 3, v{vL}
                    v_lshl_add_u32 v{rbF}, v{rbF + 1}, 3, v{rbF}''')
                    ops += [S.add(f'v_xor_b32 v{rbF + n}, {32 * n}, v{rbF}') for n in range(1, 4)]
                    ops += [S.add(f'v_add_u32 v{rbF + 4 + n}, 0x10000, v{rbF + n}') for n in range(8)]
                    S.spread(ops, *et['set'], 4)
        e = p + 2
        free = min([x for x in range(32) if lastu[32 + x] >= e] + [32]) if e < 448 else 32 + (e - 448) // 4
        while nw < min(2 * free, na):
            q = 56 - nreg + nw
            job([wu_reg(S.add, q, reg_of(q))], 2 * p + 4, wat(q) - et['wl'])
            nw += 1
        while ny < min(112, 2 * (free - R0)):
            i = max(i for i in range(3) if rounds[i][2] <= ny)
            if e < rounds[i][0]:
                break
            y_load(ny, max(2 * p + 4, ok[i]), T('ok', H_Y + i))
            ny += 1
    assert ny == 112 and nw == na
    plan()
    S.shift(-56)
    for g in o.get('e_st', ()):
        S.marks.setdefault(g - 56, []).append(m.stamp_txt(f'g{g}'))
    m.stamp(S, 'f')
    for mm, u in ((0, 0), (1, 0), (0, 1), (1, 1)) if o.get('oord') else ((0, 0), (0, 1), (1, 0), (1, 1)):
        if 1:
            b = accF + (mm * 2 + u) * 8
            S.lines('\n'.join(f'v_cvt_pk_bf16_f32 v{b + e}, v{b + 2 * e}, v{b + 2 * e + 1}' for e in range(4)))
            S.lines(f'v_permlane16_swap_b32 v{b}, v{b + 2}\nv_permlane16_swap_b32 v{b + 1}, v{b + 3}')
            S.add(f'buffer_store_dwordx4 {vr(b, 4)}, v{vOut}, {Q(qO)}, ' + (f's{sM0}' if u else '0') + f' offen offset:{64 * mm} ' + o.get('omod', 'sc1 nt'))
    P.seg(S)
```

```python
import heapq
from asmlib import *

INF = 10 ** 9
CFG = {'ds': 4, 'vm': 8, 'drop': None}


class Op:
    __slots__ = ('ins', 'tail', 'rd', 'wr', 'main', 'cost', 'salu', 'at', 'by', 'lat', 'sig', 'dep', 'extra', 'wslot',
                 'gapb', 'nfree', 'idx', 'gap', 'preds', 'succs', 'npred', 'dl', 'rdy', 'q', 'name', 'after')

    def __init__(self, text, tail=None, main=False, at=None, by=None, lat=None, sig=(), dep=(), extra=(), wslot=False,
                 gapb=8, nfree=1, cost=None, name=None, after=None):
        mk = lambda t: [x.strip() if x.strip().endswith(':') else Ins(x.strip()) for x in t.split('\n') if x.strip()]
        self.ins = mk(text)
        self.tail = mk(tail) if tail else []
        self.rd, self.wr = set(), set()
        c = 0
        self.q = None
        allsalu = True
        for x in self.ins + self.tail:
            if isinstance(x, str):
                continue
            self.rd |= x.src - self.wr
            self.wr |= x.dst
        for x in self.ins:
            if isinstance(x, str):
                continue
            if x.kind == 'vmem':
                c += CFG['vm']
                self.q = 'vm'
            elif x.kind == 'ds':
                c += 8 if x.op.startswith('ds_write') else CFG['ds']
                self.q = 'lg'
            elif x.kind == 'trans':
                c += 8
            elif x.kind == 'mfma':
                c += 16
            else:
                c += 4
            if x.kind not in ('salu', 'branch'):
                allsalu = False
        self.salu = allsalu
        self.cost = c if cost is None else cost
        self.main, self.at, self.by = main, at, by
        if lat is None:
            lat = {'lg': 8, 'vm': 40, None: 0}[self.q]
            if any(not isinstance(x, str) and x.kind == 'mfma' for x in self.ins):
                lat = 4
        self.lat = lat
        self.sig, self.dep = set(sig), set(dep)
        self.extra = set(extra)
        self.wslot, self.gapb, self.nfree, self.name = wslot, gapb, nfree, name
        self.after = after


def regs(kind, b, n):
    return {(kind, b + i) for i in range(n)}


class Seg:
    def __init__(self, name):
        self.name = name
        self.ops = []
        self.nmain = 0
        self.marks = {}

    def add(self, text, **kw):
        o = Op(text, **kw)
        if o.main:
            o.idx = self.nmain
            self.nmain += 1
        self.ops.append(o)
        return o

    def lines(self, text, **kw):
        return [self.add(t, **kw) for t in text.split('\n') if t.strip()]

    @staticmethod
    def spread(ops, g0, g1, slack=0):
        n = len(ops)
        for i, o in enumerate(ops):
            g = g0 + (g1 - g0) * i / max(n, 1)
            o.at = int(g)
            o.by = int(g) + slack

    @staticmethod
    def ramp(ops, g0, g1):
        n = len(ops)
        for i, o in enumerate(ops):
            o.by = int(g0 + (g1 - g0) * (i + 1) / max(n, 1))

    def shift(self, d):
        for o in self.ops:
            if o.at is not None:
                o.at = max(0, o.at + d)
            if o.by is not None:
                o.by = max(0, o.by + d)

    def schedule(self, verbose=1):
        ops = self.ops
        lastw, readers, sigs = {}, {}, {}
        for n, o in enumerate(ops):
            o.preds, o.succs = {}, []
            o.gap = None

            def edge(p, d):
                if p is o:
                    return
                if p.main and p.tail:
                    d = max(d, 1)
                if o.preds.get(p, -1) < d:
                    o.preds[p] = d
            for r in o.rd | o.extra:
                if r in lastw:
                    p = lastw[r]
                    edge(p, 0 if (p.main and o.main) else p.lat)
            for r in o.wr:
                if r in lastw:
                    p = lastw[r]
                    edge(p, 0 if (p.main and o.main) or (p.q and p.q == o.q) else p.lat)
                for p in readers.get(r, ()):
                    edge(p, 0)
            for t in o.dep:
                for p in sigs.get(t, ()):
                    edge(p, p.lat)
            if o.after:
                edge(o.after[0], o.after[1])
            for r in o.rd | o.extra:
                readers.setdefault(r, []).append(o)
            for r in o.wr:
                lastw[r] = o
                readers[r] = []
            for t in o.sig:
                sigs.setdefault(t, []).append(o)
        for o in ops:
            for p, d in o.preds.items():
                p.succs.append((o, d))
        M = self.nmain
        for o in reversed(ops):
            if o.main:
                o.dl = o.idx
                continue
            dl = INF if o.by is None else o.by
            for s, d in o.succs:
                dl = min(dl, (s.dl - 1 - d) if s.main else (s.dl - d))
            o.dl = dl
        order = {id(o): n for n, o in enumerate(ops)}
        mains = [o for o in ops if o.main]
        out = []
        for o in ops:
            o.npred = len(o.preds)
            o.rdy = -1 if o.at is None else o.at
        waiting = []
        ready = []

        def release(o):
            for s, d in o.succs:
                s.npred -= 1
                s.rdy = max(s.rdy, o.gap + d)
                if s.npred == 0 and not s.main:
                    heapq.heappush(waiting, (s.rdy, order[id(s)], s))
        for o in ops:
            if o.npred == 0 and not o.main:
                heapq.heappush(waiting, (o.rdy, order[id(o)], o))
        stats = {'over': 0, 'forced': 0, 'early': 0}
        cur = []

        def place(o, g):
            o.gap = g
            cur.append(o)
            release(o)

        def force(o, g):
            need, st = [], [o]
            seen = set()
            while st:
                x = st.pop()
                for p in x.preds:
                    if p.gap is None and id(p) not in seen:
                        assert not p.main, f'{self.name}: op {x.ins[0].text if not isinstance(x.ins[0], str) else x.ins[0]} forced before main {p.idx} at gap {g}'
                        seen.add(id(p))
                        need.append(p)
                        st.append(p)
            need.sort(key=lambda x: order[id(x)])
            for p in need:
                place(p, g)
            return need
        est = 0
        self.gapcost = []
        for g in range(-1, M):
            cur = []
            budget, free = 0, 0
            if g >= 0:
                m = mains[g]
                m.gap = g
                release(m)
                budget = m.gapb
                free = m.nfree - (1 if g + 1 < M and mains[g + 1].wslot else 0)
            b0 = budget
            front = 0
            while True:
                while waiting and waiting[0][0] <= g:
                    x = heapq.heappop(waiting)[2]
                    if x.gap is None:
                        ready.append(x)
                ready = [x for x in ready if x.gap is None]
                ready.sort(key=lambda x: (x.dl, order[id(x)]))
                pick = None
                for x in ready:
                    c = x.cost
                    usefree = x.salu and free > 0 and not any(p.gap == g and not p.main and cur.index(p) >= front for p in x.preds)
                    if usefree:
                        c -= 4
                    if c <= budget or x.dl <= g or g == M - 1:
                        pick = (x, c, usefree)
                        break
                if pick is None:
                    break
                x, c, usefree = pick
                place(x, g)
                if usefree:
                    cur.pop()
                    cur.insert(front, x)
                    front += 1
                    free -= 1
                budget -= c
            if g + 1 < M:
                nd = force(mains[g + 1], g)
                stats['forced'] += len(nd)
                budget -= sum(x.cost for x in nd)
            else:
                rest = [x for x in ops if x.gap is None]
                for x in rest:
                    place(x, g)
                    budget -= x.cost
            if g >= 0:
                out.append((mains[g], 'head'))
                if budget < 0:
                    stats['over'] += -budget
                self.gapcost.append(b0 - budget)
            for x in cur:
                out.append((x, 'all'))
            for x in self.marks.get(g, ()):
                out.append((Op(x), 'all'))
            if g >= 0 and mains[g].tail:
                out.append((mains[g], 'tail'))
        if verbose:
            print(f'[seg {self.name}] mains={M} ops={len(ops)} over-budget cycles={stats["over"]} forced={stats["forced"]}')
        return out


class Prog:
    def __init__(self):
        self.items = []

    def raw(self, text, **kw):
        o = Op(text, **kw)
        self.items.append((o, 'all'))
        return o

    def lines(self, text, **kw):
        return [self.raw(t, **kw) for t in text.split('\n') if t.strip()]

    def seg(self, s, verbose=1):
        its = s.schedule(verbose)
        if CFG['drop']:
            its = [(o, p) for o, p in its if not (len(o.ins) == 1 and not o.tail and not isinstance(o.ins[0], str) and re.search(CFG['drop'], o.ins[0].text))]
        self.items += its

    def emit(self, k, hoist=True):
        q = {'vm': [], 'lg': []}
        out = []
        lastm = None
        cnt_at_m = None
        issued = {'vm': 0, 'lg': 0}
        maxc = {'vm': 62, 'lg': 14}
        nw = nh = 0
        for o, part in self.items:
            ins = o.tail if part == 'tail' else o.ins
            first = True
            for x in ins:
                if isinstance(x, str):
                    out.append(x)
                    lastm = None
                    continue
                if x.op == 's_waitcnt':
                    assert x.text == 's_waitcnt vmcnt(0)', 'explicit wait'
                    q['vm'] = []
                    out.append(x)
                    continue
                need = x.src | x.dst
                if first and part != 'tail':
                    need = need | o.dep | o.extra
                first = False
                myq = 'vm' if x.kind == 'vmem' else 'lg' if x.kind == 'ds' else None
                w = {}
                for name, lst in q.items():
                    nd = need if name != myq else (need - x.dst) | (x.src & x.dst)
                    if 'ALL' + name in o.dep:
                        last = len(lst) - 1
                    else:
                        last = -1
                        for i in range(len(lst) - 1, -1, -1):
                            if lst[i][1] & nd:
                                last = i
                                break
                    if last >= 0:
                        w[name] = lst[last][0]
                if w:
                    done = False
                    nw += 1
                    if hoist and lastm is not None and all(w[n] <= cnt_at_m[n] for n in w):
                        nx = out[lastm + 1] if lastm + 1 < len(out) else None
                        if isinstance(nx, dict):
                            for n in w:
                                nx[n] = min(nx.get(n, 99), maxc[n], cnt_at_m[n] - w[n])
                            done = True
                        elif nx is None or isinstance(nx, str) or nx.kind not in ('salu', 'branch'):
                            out.insert(lastm + 1, {n: min(maxc[n], cnt_at_m[n] - w[n]) for n in w})
                            done = True
                        if done:
                            nh += 1
                            for n in w:
                                lim = max(w[n], cnt_at_m[n] - maxc[n])
                                q[n] = [e for e in q[n] if e[0] > lim]
                    if not done:
                        out.append({n: min(maxc[n], issued[n] - w[n]) for n in w})
                        for n in w:
                            lim = max(w[n], issued[n] - maxc[n])
                            q[n] = [e for e in q[n] if e[0] > lim]
                out.append(x)
                if myq:
                    issued[myq] += 1
                    q[myq].append((issued[myq], x.dst | o.sig))
                if x.kind == 'mfma':
                    lastm = len(out) - 1
                    cnt_at_m = dict(issued)
                if x.kind == 'branch':
                    lastm = None
        for e in out:
            if isinstance(e, dict):
                k('s_waitcnt ' + ' '.join(f'{"vmcnt" if n == "vm" else "lgkmcnt"}({c})' for n, c in e.items()))
            elif isinstance(e, str):
                k(e)
            else:
                k(e.text)
        print(f'[prog] waits={nw} hoisted={nh}')
```
